```python
import torch

def _softmax(x, axis=-1):
    return torch.softmax(x, dim=axis)
def _gelu(x):
    return torch.nn.functional.gelu(x, approximate="tanh")
def _silu(x):
    return torch.nn.functional.silu(x)
def _sigmoid(x):
    return torch.sigmoid(x)
def _layernorm(x, axis=-1, eps=1e-5):
    m = x.mean(dim=axis, keepdim=True)
    v = x.var(dim=axis, keepdim=True, unbiased=False)
    return (x - m) / torch.sqrt(v + eps)
def _scatter_add(tgt, idx, src, axis=0):
    return tgt.clone().index_add_(axis, idx, src)
def _segment_sum(src, seg, n):
    out = torch.zeros((n,) + src.shape[1:], dtype=src.dtype)
    return out.index_add_(0, seg, src)
def _pad(x, pw):
    flat = tuple(v for pair in reversed(pw) for v in pair)
    return torch.nn.functional.pad(x, flat)

kernel_name = 'gated_mix__ssm_conv_h3__grouped_kv_mqa__prompt'

def setup_inputs():

    _w = (lambda a: (lambda t: t.to(torch.bfloat16) if t.is_floating_point() else t)(torch.as_tensor(a)))
    def _A_setup():
        B, S, D = 1, 2048, 512
        ks = 4
        return {
            "q": _w((lambda *s: torch.randn(*s, dtype=torch.bfloat16) * 0.05)(B, S, D)),
            "k": _w((lambda *s: torch.randn(*s, dtype=torch.bfloat16) * 0.2)(B, S, D)),
            "v": _w((lambda *s: torch.randn(*s, dtype=torch.bfloat16) * 0.2)(B, S, D)),
            "shift_k": _w((lambda *s: torch.randn(*s, dtype=torch.bfloat16) * 0.2)(D, ks) * 0.5),
            "ssm_k": _w((lambda *s: torch.randn(*s, dtype=torch.bfloat16) * 0.8)(D, S) * (1.0 / S ** 0.5)),
            "ssm_D": _w((lambda *s: torch.randn(*s, dtype=torch.bfloat16) * 0.2)(D)),
        }
    _A_in = _A_setup()

    def _B_setup():
        B, S, D, H = 1, 2048, 512, 32
        Dh = D // H
        return {
            "x": _w((lambda *s: torch.randn(*s, dtype=torch.bfloat16) * 0.05)(B, S, D)),
            "wq": _w((lambda *s: torch.randn(*s, dtype=torch.bfloat16) * 0.8)(D, H * Dh)),
            "wk": _w((lambda *s: torch.randn(*s, dtype=torch.bfloat16) * 0.8)(D, Dh)),
            "wv": _w((lambda *s: torch.randn(*s, dtype=torch.bfloat16) * 0.05)(D, Dh)),
            "wo": _w((lambda *s: torch.randn(*s, dtype=torch.bfloat16) * 0.05)(H * Dh, D)),
        }
    _B_in = _B_setup()

    return {
        "A_q": _A_in["q"],
        "A_k": _A_in["k"],
        "A_v": _A_in["v"],
        "A_shift_k": _A_in["shift_k"],
        "A_ssm_k": _A_in["ssm_k"],
        "A_ssm_D": _A_in["ssm_D"],
        "B_x": _B_in["x"],
        "B_wq": _B_in["wq"],
        "B_wk": _B_in["wk"],
        "B_wv": _B_in["wv"],
        "B_wo": _B_in["wo"],
        "gate_w": _w((lambda *s: torch.randn(*s, dtype=torch.bfloat16) * 0.05)(512) * 16.0),
    }

def reference(A_q, A_k, A_v, A_shift_k, A_ssm_k, A_ssm_D, B_x, B_wq, B_wk, B_wv, B_wo, gate_w):
    def _A_ref(q, k, v, shift_k, ssm_k, ssm_D):
        B, S, D = q.shape
        ks = shift_k.shape[-1]
        k_pad = _pad(k, ((0, 0), (ks - 1, 0), (0, 0)))
        k_shift = torch.zeros_like(k)
        for t in range(ks):
            k_shift = k_shift + k_pad[:, t:t + S, :] * shift_k[:, ks - 1 - t][None, None, :]
        kv = k_shift * v
        L = 2 * S
        kv_pad = _pad(kv, ((0, 0), (0, S), (0, 0)))
        kf_pad = _pad(ssm_k, ((0, 0), (0, S)))
        kv_f = (lambda x, axes=(-2,-1): torch.fft.rfft2(x.float(), dim=axes))(kv_pad[:, None, :, :], axes=(1, 2))
        kf_f = (lambda x, axes=(-2,-1): torch.fft.rfft2(x.float(), dim=axes))(kf_pad[:, None, :], axes=(1, 2))
        kf_f = (lambda x, *d: x.permute(*d))(kf_f, 1, 2, 0)
        y_f = kv_f * kf_f[None, :, :, :]
        y = (lambda x, s, axes=(-2,-1): torch.fft.irfft2(x, s=s, dim=axes).to(torch.bfloat16))(y_f, (1, L), axes=(1, 2))[:, 0, :S, :]
        y = y + kv * ssm_D[None, None, :]
        return q * y

    def _B_ref(x, wq, wk, wv, wo):
        B, S, D = x.shape
        H = 32
        Dh = D // H
        q = (lambda x, *d: x.permute(*d))((x @ wq).reshape(B, S, H, Dh), 0, 2, 1, 3)
        k = x @ wk
        v = x @ wv
        scores = torch.einsum("bhqd,bkd->bhqk", q, k) * (Dh ** -0.5)
        p = _softmax(scores, axis=-1)
        o = torch.einsum("bhqk,bkd->bhqd", p, v)
        return (lambda x, *d: x.permute(*d))(o, 0, 2, 1, 3).reshape(B, S, H * Dh) @ wo

    x = A_q
    g = _sigmoid((x * gate_w).sum(-1, keepdims=True))
    a = _A_ref(x, A_k, A_v, A_shift_k, A_ssm_k, A_ssm_D)
    b = _B_ref(x, B_wq, B_wk, B_wv, B_wo)
    return g * a + (1 - g) * b
```

```python
import re

TRANS = ("v_exp_f32", "v_log_f32", "v_rcp_f32", "v_rsq_f32", "v_sqrt_f32", "v_sin_f32", "v_cos_f32",
         "v_exp_f16", "v_rcp_iflag_f32")

def regs_of(tok):
    tok = tok.strip()
    tok = re.sub(r"^-|^abs\(|\)$|^\|", "", tok).strip("|")
    m = re.fullmatch(r"([vas])(\d+)", tok)
    if m: return {tok}
    m = re.fullmatch(r"([vas])\[(\d+):(\d+)\]", tok)
    if m: return {f"{m.group(1)}{i}" for i in range(int(m.group(2)), int(m.group(3)) + 1)}
    if tok in ("vcc",): return {"vcc"}
    if tok in ("vcc_lo", "vcc_hi"): return {"vcc"}
    if tok in ("exec", "exec_lo", "exec_hi"): return {"exec"}
    if tok == "m0": return {"m0"}
    return set()

class Ins:
    def __init__(self, text):
        self.text = text
        t = text.split(";")[0].strip()
        parts = t.split(None, 1)
        self.op = parts[0]
        rest = parts[1] if len(parts) > 1 else ""
        ops, cur, d = [], "", 0
        for ch in rest:
            if ch == "[": d += 1
            if ch == "]": d -= 1
            if ch == "," and d == 0:
                ops.append(cur.strip()); cur = ""
            else:
                cur += ch
        if cur.strip(): ops.append(cur.strip())
        self.mods = ""
        if ops:
            lp = ops[-1].split(None, 1)
            ops[-1] = lp[0]
            if len(lp) > 1: self.mods = lp[1]
        self.ops = ops
        op = self.op
        self.is_mfma = op.startswith("v_mfma")
        self.is_valu = op.startswith("v_") and not self.is_mfma
        self.is_salu = op.startswith("s_") and not op.startswith(("s_load", "s_waitcnt", "s_nop", "s_barrier", "s_branch", "s_cbranch", "s_endpgm", "s_memtime", "s_memrealtime", "s_setprio", "s_sleep", "s_buffer_load"))
        self.is_vmem = op.startswith(("buffer_", "global_", "flat_"))
        self.is_ds = op.startswith("ds_")
        self.is_trans = any(op.startswith(x) for x in TRANS)
        self.is_dpp = "_dpp" in op or "row_" in self.mods or "quad_perm" in self.mods or "wave_" in self.mods
        self.is_permlane = op.startswith("v_permlane")
        self.is_lds_dma = self.is_vmem and (re.search(r"\blds\b", self.mods) is not None or "_lds_" in op)
        self.is_branch = op.startswith(("s_branch", "s_cbranch"))
        self.w, self.r = set(), set()
        R = [regs_of(o) for o in ops]
        allr = lambda l: set().union(*l) if l else set()
        if self.is_mfma:
            self.w = R[0]; self.rA = R[1]; self.rB = R[2]; self.rC = R[3]; self.r = R[1] | R[2] | R[3]
            self.passes = 8 if "32x32" in op else 4
        elif self.is_valu:
            if op.startswith("v_cmp"):
                self.w = R[0]; self.r = allr(R[1:])
            elif self.is_permlane and "swap" in op:
                self.w = R[0] | R[1]; self.r = R[0] | R[1]
            elif op.startswith(("v_add_co", "v_sub_co", "v_addc_co", "v_subb_co")):
                self.w = R[0] | R[1]; self.r = allr(R[2:])
            else:
                self.w = R[0]; self.r = allr(R[1:])
                if op.startswith(("v_fmac", "v_dot2c", "v_pk_fmac")) or "UNUSED_PRESERVE" in self.mods or self.is_dpp:
                    self.r |= R[0]
                if op.startswith("v_cndmask") and len(ops) == 3: self.r |= {"vcc"}
        elif self.is_vmem:
            if "store" in op or (("atomic" in op) and "sc0" not in self.mods) or self.is_lds_dma:
                self.r = allr(R)
                self.data = R[0] if "store" in op and op.startswith("buffer") else (R[1] if "store" in op else set())
            elif op.startswith("buffer_wbl2") or op.startswith("buffer_inv"):
                pass
            else:
                self.w = R[0]; self.r = allr(R[1:])
                if "atomic" in op: self.r |= R[0]
            if self.is_lds_dma: self.r |= {"m0"}
        elif self.is_ds:
            if op.startswith(("ds_write", "ds_add", "ds_max", "ds_or")) and "rtn" not in op:
                self.r = allr(R)
            else:
                self.w = R[0]; self.r = allr(R[1:])
        elif op.startswith("s_"):
            if op.startswith(("s_cmp", "s_cbranch", "s_branch", "s_waitcnt", "s_nop", "s_barrier", "s_endpgm", "s_setprio", "s_sleep", "s_bitcmp")):
                self.r = allr(R)
            else:
                self.w = R[0] if R else set(); self.r = allr(R[1:])
                if "saveexec" in op: self.w = self.w | {"exec"}
        self.states = 1
        if op == "s_nop": self.states = int(ops[0], 0) + 1
        self.wide_store = self.is_vmem and "store" in op and ("x3" in op or "x4" in op)

def need(p, c):
    n = 0
    vg = lambda s: {x for x in s if x[0] in "va" and x not in ("vcc",)}
    sg = lambda s: {x for x in s if x[0] == "s" or x == "vcc"}
    if p.is_valu:
        wv = vg(p.w); ws = sg(p.w)
        if c.is_mfma and wv & c.r: n = max(n, 2)
        if c.is_permlane and wv & c.r: n = max(n, 2)
        if c.is_valu and c.is_dpp and wv & c.r: n = max(n, 2)
        if c.op.startswith(("v_readlane", "v_readfirstlane")) and wv & c.r: n = max(n, 1)
        if p.is_trans and c.is_valu and not c.is_trans and wv & c.r: n = max(n, 1)
        if p.is_trans and (c.is_mfma) and wv & c.r: n = max(n, 2)
        if ("sdwa" in p.op or "op_sel" in p.mods) and c.is_valu and wv & (c.r | c.w): n = max(n, 1)
        if ws:
            if c.is_valu and ws & c.r: n = max(n, 4 if c.op.startswith(("v_readlane", "v_writelane")) else 2)
            if c.is_vmem and ws & c.r: n = max(n, 5)
            if (c.is_salu or c.is_branch) and ws & c.r: n = max(n, 1)
            if c.op in ("s_cbranch_vccz", "s_cbranch_vccnz") and "vcc" in ws: n = max(n, 1)
        if "exec" in p.w: n = max(n, 5)
    if p.is_mfma:
        big = 12 if p.passes == 8 else 8
        if (c.is_valu or c.is_vmem or c.is_ds) and p.w & (c.r | c.w): n = max(n, big)
        if c.is_mfma:
            if p.w & (c.rA | c.rB): n = max(n, big)
            if p.w & c.rC and not (p.w == c.rC and p.passes == c.passes): n = max(n, 10 if p.passes == 8 else 6)
            if p.w & c.w and not (p.w == c.rC and p.passes == c.passes and c.w == p.w): n = max(n, 10 if p.passes == 8 else 6)
        if c.is_valu and p.rC & c.w: n = max(n, 7 if p.passes == 8 else 3)
    if p.op.startswith("s_") and "m0" in p.w and "m0" in c.r and (c.is_vmem or c.is_ds): n = max(n, 1)
    if p.wide_store and vg(p.data) & c.w: n = max(n, 2 if c.is_valu else 1)
    return n

HIST = 24

class Asm:
    def __init__(self):
        self.items = []
    def I(self, text):
        for line in text.strip().split("\n"):
            line = line.strip()
            if not line or line.startswith(";"): continue
            if line.endswith(":") and " " not in line: self.L(line[:-1]); continue
            if line.startswith("."): self.T(line); continue
            self.items.append(("i", Ins(line)))
    def L(self, label): self.items.append(("l", label))
    def T(self, text): self.items.append(("t", text))

    def finalize(self):
        out = []
        hist = []
        def required(c, hist):
            dist = 0; req = 0
            for p in reversed(hist):
                n = need(p, c)
                if n > dist: req = max(req, n - dist)
                dist += p.states
                if dist > 24: break
            return req
        for kind, x in self.items:
            if kind == "i":
                req = required(x, hist)
                while req > 0:
                    k = min(req, 16)
                    nop = Ins(f"s_nop {k-1}")
                    out.append(("i", nop)); hist.append(nop); req -= k
                out.append((kind, x)); hist.append(x); hist = hist[-HIST:]
                if x.op in ("s_branch", "s_endpgm"): hist = []
            else:
                out.append((kind, x))
        labels = {x: i for i, (k, x) in enumerate(out) if k == "l"}
        for i, (k, x) in enumerate(out):
            if k == "i" and x.is_branch:
                tgt = x.ops[0]
                h = [y for kk, y in out[max(0, i - 60):i + 1] if kk == "i"][-HIST:]
                j = labels[tgt]; cnt = 0
                while j < len(out) and cnt < 24:
                    kk, y = out[j]
                    if kk == "i":
                        r = required(y, h)
                        if r > 0:
                            raise RuntimeError(f"hazard across branch {x.text} -> {y.text}: need {r} more states")
                        h = h + [y]; cnt += y.states
                        if y.op in ("s_branch", "s_endpgm"): break
                    j += 1
        self.items = out
    def text(self):
        s = []
        for kind, x in self.items:
            if kind == "i": s.append("    " + x.text)
            elif kind == "l": s.append(x + ":")
            else: s.append(x)
        return "\n".join(s) + "\n"

def kernel_wrap(name, asm, nvgpr, nsgpr=96, accum=None):
    asm.finalize()
    accum = accum if accum is not None else (nvgpr + 3) // 4 * 4
    body = f".text\n.globl {name}\n.p2align 8\n.type {name},@function\n{name}:\n" + asm.text()
    kd = f""".section .rodata,"a"
.p2align 6
.amdhsa_kernel {name}
  .amdhsa_next_free_vgpr {nvgpr}
  .amdhsa_next_free_sgpr {nsgpr}
  .amdhsa_accum_offset {accum}
  .amdhsa_group_segment_fixed_size 0
  .amdhsa_kernarg_size 120
  .amdhsa_user_sgpr_count 2
  .amdhsa_user_sgpr_kernarg_segment_ptr 1
  .amdhsa_system_sgpr_workgroup_id_x 1
.end_amdhsa_kernel
"""
    return body, kd
```

```python
import sys, struct
from asmlib import Asm, kernel_wrap

NAME = "gated_mix__ssm_conv_h3__grouped_kv_mqa__prompt"
WS_Q, WS_O, WS_U, WS_Y, WS_KV, WS_QN, WS_KN, WS_G = 0x0, 0x200000, 0x400000, 0x600000, 0x800000, 0x840000, 0x880000, 0x881000
WS_SIZE = 0x900000
def f2u(x): return struct.unpack("<I", struct.pack("<f", x))[0]
LOG2E = 1.4426950408889634
CSCALE = 0.25 * LOG2E

def srd(a, d, lo, n):
    a.I(f"""
    s_mov_b32 s{d}, s{lo}
    s_and_b32 s{d+1}, s{lo+1}, 0xffff
    s_mov_b32 s{d+2}, {n}
    s_mov_b32 s{d+3}, 0x20000""")

def load_ptrs(a):
    a.I("""
    s_load_dwordx16 s[16:31], s[0:1], 0
    s_load_dwordx8 s[32:39], s[0:1], 64
    s_load_dwordx4 s[40:43], s[0:1], 96
    s_load_dwordx2 s[44:45], s[0:1], 112""")
P_X, P_K, P_V, P_SH, P_H, P_D, P_WQ, P_WK, P_WV, P_WO, P_GW, P_OUT, P_DBG, P_WS = 16, 18, 20, 22, 24, 26, 30, 32, 34, 36, 38, 40, 42, 44

def wave_allreduce(a, op, v, t):
    for r in (8, 4, 2, 1):
        a.I(f"{op}_dpp v{v}, v{v}, v{v} row_ror:{r} row_mask:0xf bank_mask:0xf")
    a.I(f"""
    v_mov_b32 v{t}, v{v}
    v_permlane16_swap_b32 v{v}, v{t}
    {op} v{v}, v{v}, v{t}
    v_mov_b32 v{t}, v{v}
    v_permlane32_swap_b32 v{v}, v{t}
    {op} v{v}, v{v}, v{t}""")

def k1():
    a = Asm()
    X_L, WQ_L, WKV_L, TB = 0, 65536, 131072, 147456
    a.I("s_cmp_ge_u32 s2, 256\ns_cbranch_scc1 K1_END")
    load_ptrs(a)
    a.I("""
    s_and_b32 s3, s2, 7
    s_lshl_b32 s3, s3, 2
    s_lshr_b32 s4, s2, 3
    s_and_b32 s4, s4, 3
    s_or_b32 s3, s3, s4            ; r
    s_lshr_b32 s4, s2, 5           ; hg
    v_lshrrev_b32 v1, 6, v0
    v_and_b32 v2, 63, v0           ; lane
    v_readfirstlane_b32 s5, v1     ; w
    v_and_b32 v3, 31, v0
    v_lshrrev_b32 v4, 5, v0        ; j
    v_lshlrev_b32 v5, 12, v4       ; j*4*1024
    v_lshl_add_u32 v5, v3, 2, v5   ; + lam*4
    s_lshl_b32 s6, s3, 16          ; 64r*1024
    s_lshl_b32 s7, s4, 7           ; hg*128
    s_add_u32 s6, s6, s7
    v_add_u32 v5, s6, v5           ; vo_base
    v_subrev_u32 v6, 3072, v5      ; vo_halo
    v_lshlrev_b32 v7, 4, v3        ; lam*16
    s_lshl_b32 s8, s4, 9           ; hg*64ch*8B
    v_lshlrev_b32 v8, 4, v2        ; lane*16
    s_waitcnt lgkmcnt(0)""")
    SX, SK, SV, SWQ, SWKV, SSH, SGW, SWS = 48, 52, 56, 60, 64, 68, 72, 76
    srd(a, SK, P_K, 0x200000); srd(a, SV, P_V, 0x200000); srd(a, SSH, P_SH, 4096); srd(a, SX, P_X, 0x200000)
    srd(a, SGW, P_GW, 1024)
    for i in range(3): a.I(f"buffer_load_dword v{10+i}, v6, s[{SK}:{SK+3}], 0 offen offset:{1024*i}")
    for i in range(4): a.I(f"buffer_load_dword v{13+i}, v5, s[{SK}:{SK+3}], 0 offen offset:{1024*i}")
    for i in range(4): a.I(f"buffer_load_dword v{17+i}, v5, s[{SV}:{SV+3}], 0 offen offset:{1024*i}")
    a.I(f"buffer_load_dwordx4 v[24:27], v7, s[{SSH}:{SSH+3}], s8 offen")
    a.I(f"""
    s_lshl_b32 s9, s3, 6
    s_lshl_b32 s10, s4, 3
    s_add_u32 s9, s9, s10
    s_add_u32 s9, s9, s5
    s_lshl_b32 s10, s9, 10
    buffer_load_dwordx4 v[28:31], v8, s[{SX}:{SX+3}], s10 offen
    buffer_load_dwordx4 v[32:35], v8, s[{SGW}:{SGW+3}], 0 offen""")
    srd(a, SWQ, P_WQ, 0x80000)
    a.I(f"""
    s_cmp_lt_u32 s4, 4
    s_cselect_b32 s{SWKV}, s{P_WK}, s{P_WV}
    s_cselect_b32 s{SWKV+1}, s{P_WK+1}, s{P_WV+1}
    s_and_b32 s{SWKV+1}, s{SWKV+1}, 0xffff
    s_mov_b32 s{SWKV+2}, 16384
    s_mov_b32 s{SWKV+3}, 0x20000""")
    srd(a, SWS, P_WS, WS_SIZE)
    a.I("""
    v_and_b32 v36, 7, v2
    v_lshlrev_b32 v36, 10, v36
    v_lshrrev_b32 v37, 3, v2
    v_lshl_add_u32 v36, v37, 4, v36      ; (l&7)*1024 + (l>>3)*16
    s_lshl_b32 s11, s3, 16
    s_lshl_b32 s12, s5, 13
    s_add_u32 s11, s11, s12              ; (64r+8w)*1024
    s_mov_b32 m0, s12""")
    for kb in range(8):
        a.I(f"buffer_load_dwordx4 v36, s[{SX}:{SX+3}], s11 offen offset:{128*kb} lds")
        if kb < 7: a.I("s_add_u32 m0, m0, 896")
    a.I(f"""
    v_lshrrev_b32 v37, 1, v2             ; pos
    v_and_b32 v38, 0x13, v37
    v_and_b32 v39, 4, v37
    v_lshl_or_b32 v38, v39, 1, v38
    v_and_b32 v39, 8, v37
    v_lshrrev_b32 v39, 1, v39
    v_or_b32 v38, v38, v39               ; swap23(pos)
    v_lshlrev_b32 v38, 5, v38
    v_and_b32 v39, 1, v2
    v_lshl_or_b32 v38, v39, 4, v38       ; *32 + c*16
    s_lshl_b32 s13, s5, 11
    s_add_u32 m0, s13, {WKV_L}""")
    for e in range(2):
        a.I(f"buffer_load_dwordx4 v38, s[{SWKV}:{SWKV+3}], s13 offen offset:{1024*e} lds")
    a.I(f"""
    v_and_b32 v37, 7, v37                ; slot
    v_lshlrev_b32 v40, 10, v37
    v_lshrrev_b32 v41, 4, v2             ; head
    v_lshl_or_b32 v40, v41, 5, v40
    v_lshl_or_b32 v40, v39, 4, v40
    v_xor_b32 v41, 4096, v40
    s_lshl_b32 s14, s5, 16               ; 8w*8192
    s_add_u32 s14, s14, s7
    s_add_u32 m0, s12, {WQ_L}""")
    for e in range(8):
        a.I(f"buffer_load_dwordx4 v{40 + (e & 1)}, s[{SWQ}:{SWQ+3}], s14 offen lds")
        if e < 7: a.I("s_add_u32 m0, m0, 1024\ns_add_u32 s14, s14, 8192")
    a.I("s_waitcnt vmcnt(20)")
    a.I("s_mov_b32 s15, 0xffff0000")
    a.I("""
    v_lshlrev_b32 v44, 16, v24
    v_and_b32 v45, s15, v24
    v_lshlrev_b32 v46, 16, v25
    v_and_b32 v47, s15, v25
    v_lshlrev_b32 v48, 16, v26
    v_and_b32 v49, s15, v26
    v_lshlrev_b32 v50, 16, v27
    v_and_b32 v51, s15, v27""")
    for i in range(7):
        a.I(f"v_lshlrev_b32 v{52+i}, 16, v{10+i}\nv_and_b32 v{60+i}, s15, v{10+i}")
    for i in range(4):
        a.I(f"v_lshlrev_b32 v{68+i}, 16, v{17+i}\nv_and_b32 v{72+i}, s15, v{17+i}")
    for c in range(2):
        kb, wb, vb, ob = 52 + 8 * c, 44 + 4 * c, 68 + 4 * c, 76 + 4 * c
        for i in range(4): a.I(f"v_mul_f32 v{ob+i}, v{kb+i}, v{wb+3}")
        for jj in (2, 1, 0):
            for i in range(4): a.I(f"v_fmac_f32 v{ob+i}, v{kb+i+3-jj}, v{wb+jj}")
        for i in range(4): a.I(f"v_mul_f32 v{ob+i}, v{ob+i}, v{vb+i}")
    a.I(f"""
    v_cvt_pk_bf16_f32 v84, v79, v78
    v_cvt_pk_bf16_f32 v85, v77, v76
    v_cvt_pk_bf16_f32 v86, v83, v82
    v_cvt_pk_bf16_f32 v87, v81, v80
    v_mul_u32_u24 v9, 288, v3
    v_sub_u32 v21, 15, v4
    v_lshl_add_u32 v9, v21, 3, v9
    s_mov_b32 s15, {TB}
    v_add_u32 v9, s15, v9
    ds_write_b64 v9, v[84:85]
    ds_write_b64 v9, v[86:87] offset:144""")
    a.I("s_waitcnt vmcnt(18)")
    a.I("v_mov_b32 v22, 0")
    for i in range(4): a.I(f"v_dot2_f32_bf16 v22, v{28+i}, v{32+i}, v22")
    a.I("s_nop 2")
    wave_allreduce(a, "v_add_f32", 22, 23)
    a.I(f"""
    v_mul_f32 v22, {hex(f2u(-LOG2E))}, v22
    v_exp_f32 v22, v22
    v_add_f32 v22, 1.0, v22
    v_rcp_f32 v22, v22
    s_lshl_b32 s10, s9, 2
    s_add_u32 s10, s10, {WS_G}
    v_mov_b32 v23, 0
    s_mov_b64 exec, 1
    buffer_store_dword v22, v23, s[{SWS}:{SWS+3}], s10 offen
    s_mov_b64 exec, -1""")
    a.I(f"""
    v_and_b32 v10, 15, v2                ; n
    v_lshrrev_b32 v11, 4, v2             ; g
    v_lshrrev_b32 v12, 3, v10
    v_lshlrev_b32 v12, 13, v12           ; (n>>3)*8192
    v_and_b32 v13, 7, v10
    v_lshl_or_b32 v12, v13, 4, v12
    v_lshl_or_b32 v12, v11, 7, v12
    v_lshrrev_b32 v13, 2, v10
    v_and_b32 v14, 3, v10
    v_lshlrev_b32 v15, 3, v14            ; cc*8
    v_lshl_or_b32 v15, v13, 5, v15       ; + rr*32
    v_and_b32 v16, 1, v11
    v_lshl_or_b32 v17, v16, 7, v15
    v_lshl_or_b32 v17, v11, 10, v17      ; + g*1024
    s_and_b32 s12, s5, 3
    s_lshl_b32 s12, s12, 8
    s_add_u32 s12, s12, {WQ_L}
    v_add_u32 v17, s12, v17
    v_xor_b32 v18, 128, v17              ; j=1
    v_lshrrev_b32 v19, 1, v11
    v_lshlrev_b32 v19, 9, v19
    v_lshl_or_b32 v19, v16, 7, v19
    v_or_b32 v19, v19, v15
    s_mov_b32 s12, {WKV_L}
    v_add_u32 v19, s12, v19              ; j=0 ; j=1 is +256
    s_waitcnt vmcnt(0) lgkmcnt(0)
    s_barrier""")
    a.I(f"""
    v_lshrrev_b32 v20, 3, v0             ; ch
    v_and_b32 v21, 7, v0                 ; chunk
    v_mul_u32_u24 v24, 144, v20
    v_lshl_add_u32 v24, v21, 4, v24
    v_add_u32 v24, s15, v24
    ds_read_b128 v[28:31], v24
    v_lshlrev_b32 v25, 12, v20
    v_lshl_add_u32 v25, v21, 4, v25
    s_lshl_b32 s10, s4, 18               ; 64hg*4096
    s_lshl_b32 s11, s3, 7
    s_sub_u32 s10, s10, s11
    s_add_u32 s10, s10, {WS_U + 1984*2}
    s_waitcnt lgkmcnt(0)
    buffer_store_dwordx4 v[28:31], v25, s[{SWS}:{SWS+3}], s10 offen""")
    a.I("s_cmp_lg_u32 s5, 0\ns_cbranch_scc1 K1_Q")
    a.I("""
    s_and_b32 s10, s4, 3                 ; i
    s_lshl_b32 s11, s10, 14
    v_add_u32 v20, s11, v12""")
    for i in range(4): a.I(f"v_mov_b32 v{24+i}, 0")
    def kv_reads(s):
        b = 32 + 8 * (s % 4)
        a.I(f"ds_read_b128 v[{b}:{b+3}], v20 offset:{512*s}")
        a.I(f"ds_read_b64_tr_b16 v[{b+4}:{b+5}], v19 offset:{1024*s}")
        a.I(f"ds_read_b64_tr_b16 v[{b+6}:{b+7}], v19 offset:{1024*s+256}")
    a.I("s_cmp_ge_u32 s4, 4\ns_cbranch_scc1 K1_V")
    for isv in (0, 1):
        if isv: a.L("K1_V")
        for s in range(3): kv_reads(s)
        for s in range(16):
            if s + 3 < 16: kv_reads(s + 3)
            a.I(f"s_waitcnt lgkmcnt({3*min(3, 15-s)})")
            b = 32 + 8 * (s % 4)
            if isv: a.I(f"v_mfma_f32_16x16x32_bf16 v[24:27], v[{b}:{b+3}], v[{b+4}:{b+7}], v[24:27]")
            else:   a.I(f"v_mfma_f32_16x16x32_bf16 v[24:27], v[{b+4}:{b+7}], v[{b}:{b+3}], v[24:27]")
        a.I(f"""
        s_lshr_b32 s11, s10, 1
        s_lshl_b32 s12, s3, 1
        s_add_u32 s11, s11, s12
        s_lshl_b32 s11, s11, 11              ; T*2048
        s_and_b32 s12, s10, 1""")
        if not isv:
            a.I(f"s_mov_b32 s13, {hex(f2u(CSCALE))}")
            for i in range(4): a.I(f"v_mul_f32 v{24+i}, s13, v{24+i}")
            a.I(f"""
            v_cvt_pk_bf16_f32 v28, v24, v25
            v_cvt_pk_bf16_f32 v29, v26, v27
            v_lshrrev_b32 v30, 1, v11
            v_lshlrev_b32 v30, 9, v30
            v_lshl_or_b32 v30, v10, 4, v30
            v_lshl_or_b32 v30, v16, 3, v30
            s_lshl_b32 s12, s12, 8
            s_add_u32 s11, s11, s12
            s_add_u32 s11, s11, {WS_KV}
            buffer_store_dwordx2 v[28:29], v30, s[{SWS}:{SWS+3}], s11 offen
            v_mov_b32 v31, 0
            v_dot2_f32_bf16 v31, v28, v28, v31
            v_dot2_f32_bf16 v31, v29, v29, v31
            s_nop 2
            v_mov_b32 v32, v31
            v_permlane16_swap_b32 v31, v32
            v_add_f32 v31, v31, v32
            v_mov_b32 v32, v31
            v_permlane32_swap_b32 v31, v32
            v_add_f32 v31, v31, v32""")
            for r in (8, 4, 2, 1):
                a.I(f"v_max_f32_dpp v31, v31, v31 row_ror:{r} row_mask:0xf bank_mask:0xf")
            a.I(f"""
            s_lshl_b32 s11, s3, 2
            s_add_u32 s11, s11, s10
            s_lshl_b32 s11, s11, 2
            s_add_u32 s11, s11, {WS_KN}
            v_mov_b32 v32, 0
            s_mov_b64 exec, 1
            buffer_store_dword v31, v32, s[{SWS}:{SWS+3}], s11 offen
            s_mov_b64 exec, -1
            s_branch K1_Q""")
        else:
            a.I(f"""
            v_cvt_pk_bf16_f32 v28, v24, v25
            v_cvt_pk_bf16_f32 v29, v26, v27
            v_lshrrev_b32 v30, 1, v11
            v_lshlrev_b32 v30, 3, v30
            v_lshl_or_b32 v30, v10, 4, v30
            v_lshl_or_b32 v30, v16, 8, v30
            s_lshl_b32 s12, s12, 9
            s_add_u32 s11, s11, s12
            s_add_u32 s11, s11, {WS_KV + 1024}
            buffer_store_dwordx2 v[28:29], v30, s[{SWS}:{SWS+3}], s11 offen""")
    a.L("K1_Q")
    a.I("""
    s_lshr_b32 s10, s5, 2                ; nt
    s_lshl_b32 s11, s10, 15
    v_add_u32 v20, s11, v12""")
    for i in range(8): a.I(f"v_mov_b32 v{24+i}, 0")
    def q_reads(s):
        b = 32 + 12 * (s % 4)
        a.I(f"ds_read_b64_tr_b16 v[{b}:{b+1}], v17 offset:{4096*s}")
        a.I(f"ds_read_b64_tr_b16 v[{b+2}:{b+3}], v18 offset:{4096*s}")
        a.I(f"ds_read_b128 v[{b+4}:{b+7}], v20 offset:{512*s}")
        a.I(f"ds_read_b128 v[{b+8}:{b+11}], v20 offset:{512*s+16384}")
    for s in range(3): q_reads(s)
    for s in range(16):
        if s + 3 < 16: q_reads(s + 3)
        a.I(f"s_waitcnt lgkmcnt({4*min(3, 15-s)})")
        b = 32 + 12 * (s % 4)
        a.I(f"v_mfma_f32_16x16x32_bf16 v[24:27], v[{b}:{b+3}], v[{b+4}:{b+7}], v[24:27]")
        a.I(f"v_mfma_f32_16x16x32_bf16 v[28:31], v[{b}:{b+3}], v[{b+8}:{b+11}], v[28:31]")
    a.I(f"""
    v_cvt_pk_bf16_f32 v32, v24, v25
    v_cvt_pk_bf16_f32 v33, v26, v27
    v_cvt_pk_bf16_f32 v34, v28, v29
    v_cvt_pk_bf16_f32 v35, v30, v31
    v_permlane16_swap_b32 v32, v34
    v_permlane16_swap_b32 v33, v35
    s_lshl_b32 s11, s3, 1
    s_add_u32 s11, s11, s10
    s_lshl_b32 s11, s11, 5
    s_lshl_b32 s12, s4, 2
    s_add_u32 s11, s11, s12
    s_and_b32 s12, s5, 3
    s_add_u32 s11, s11, s12              ; qt
    s_lshl_b32 s12, s11, 10
    buffer_store_dwordx4 v[32:35], v8, s[{SWS}:{SWS+3}], s12 offen
    v_mov_b32 v36, 0""")
    for i in range(4): a.I(f"v_dot2_f32_bf16 v36, v{32+i}, v{32+i}, v36")
    a.I(f"""
    s_nop 2
    v_mov_b32 v37, v36
    v_permlane32_swap_b32 v36, v37
    v_add_f32 v36, v36, v37
    v_lshlrev_b32 v38, 2, v2
    s_lshl_b32 s12, s11, 7
    s_add_u32 s12, s12, {WS_QN}
    s_mov_b64 exec, 0xffffffff
    buffer_store_dword v36, v38, s[{SWS}:{SWS+3}], s12 offen
    K1_END:
    s_endpgm""")
    return kernel_wrap("k1_kernel", a, 96)

U_L = 131072
U_ST = 7680
H_L = U_L + 2 * U_ST
H_ST = 4160
K2_LDS = H_L + 4 * H_ST
def k2():
    a = Asm()
    a.I("s_cmp_ge_u32 s2, 256\ns_cbranch_scc1 K2_END")
    load_ptrs(a)
    a.I("""
    v_lshrrev_b32 v1, 6, v0
    v_and_b32 v2, 63, v0           ; lane
    v_readfirstlane_b32 s5, v1     ; w
    v_lshlrev_b32 v8, 4, v2        ; lane*16
    s_waitcnt lgkmcnt(0)""")
    SWS, SH, SU, SD = 48, 52, 56, 60
    srd(a, SWS, P_WS, WS_SIZE)
    a.I("s_cmp_ge_u32 s5, 8\ns_cbranch_scc1 K2_CONV")
    Q, CM, O, SA, SB, P, KF, VF = 4, 16, 32, 48, 64, 80, 88, 96
    a.I(f"""
    s_lshl_b32 s6, s2, 3
    s_add_u32 s6, s6, s5           ; qt
    s_lshl_b32 s7, s6, 10
    buffer_load_dwordx4 v[{Q}:{Q+3}], v8, s[{SWS}:{SWS+3}], s7 offen
    v_and_b32 v9, 31, v2
    v_lshlrev_b32 v9, 2, v9
    s_lshl_b32 s8, s6, 7
    s_add_u32 s8, s8, {WS_QN}
    buffer_load_dword v10, v9, s[{SWS}:{SWS+3}], s8 offen
    v_lshlrev_b32 v11, 3, v2
    s_mov_b32 s8, {WS_KN}
    buffer_load_dwordx2 v[12:13], v11, s[{SWS}:{SWS+3}], s8 offen
    s_lshl_b32 s9, s5, 11
    s_mov_b32 m0, s9
    s_add_u32 s10, s9, {WS_KV}
    buffer_load_dwordx4 v8, s[{SWS}:{SWS+3}], s10 offen lds
    buffer_load_dwordx4 v8, s[{SWS}:{SWS+3}], s10 offen offset:1024 lds""")
    for c in range(1, 8):
        a.I(f"""
        s_add_u32 m0, m0, 16384
        s_add_u32 s10, s10, 16384
        buffer_load_dwordx4 v8, s[{SWS}:{SWS+3}], s10 offen lds
        buffer_load_dwordx4 v8, s[{SWS}:{SWS+3}], s10 offen offset:1024 lds""")
    a.I(f"""
    v_and_b32 v14, 27, v2
    v_cmp_eq_u32 vcc, 16, v14          ; (l&31) in {{16,20}}
    v_mov_b32 v15, 0x3f803f80
    v_cndmask_b32 v14, 0, v15, vcc""")
    for i in range(16): a.I(f"v_mov_b32 v{VF+i}, v14")
    a.I(f"""
    v_and_b32 v3, 15, v2
    v_lshlrev_b32 v3, 4, v3
    v_lshrrev_b32 v14, 5, v2
    v_lshl_or_b32 v3, v14, 8, v3
    v_add_u32 v3, 1024, v3             ; V addr
    v_mov_b32 v1, v8                   ; K addr
    s_mov_b32 s12, 0x0000ffff
    s_mov_b32 s13, 0x0000ffff
    s_waitcnt vmcnt(16)
    v_max_f32 v12, v12, v13""")
    wave_allreduce(a, "v_max_f32", 12, 13)
    a.I(f"""
    v_mul_f32 v10, v10, v12
    v_sqrt_f32 v10, v10
    s_mov_b32 s14, 0
    v_mul_f32 v10, {hex(f2u(-(1.0 + 2.0**-6)))}, v10""")
    for i in range(16): a.I(f"v_mov_b32 v{CM+i}, v10")
    a.I("s_waitcnt vmcnt(14)\ns_barrier")
    def rdK(buf, off): a.I(f"ds_read_b128 v[{KF+4*buf}:{KF+4*buf+3}], v1 offset:{off}")
    def rdV(buf, off):
        a.I("s_mov_b64 exec, s[12:13]")
        a.I(f"ds_read_b128 v[{VF+8*buf}:{VF+8*buf+3}], v3 offset:{off}")
        a.I(f"ds_read_b128 v[{VF+8*buf+4}:{VF+8*buf+7}], v3 offset:{off+512}")
        a.I("s_mov_b64 exec, -1")
    def qk(S, buf): a.I(f"v_mfma_f32_32x32x16_bf16 v[{S}:{S+15}], v[{KF+4*buf}:{KF+4*buf+3}], v[{Q}:{Q+3}], v[{CM}:{CM+15}]")
    def tile(cur, nxt, par, do_qk=True, do_rd=True, off=0):
        a.I("s_waitcnt lgkmcnt(0)")
        if do_qk: qk(nxt, par ^ 1)
        if do_rd:
            if do_rd == 2: rdK(par, off + 4096)
            rdV(par ^ 1, off + 2048)
        for half in range(2):
            b = cur + 8 * half
            for i in range(8): a.I(f"v_exp_f32 v{b+i}, v{b+i}")
            if half == 1:
                a.I(f"v_mfma_f32_32x32x16_bf16 v[{O}:{O+15}], v[{VF+8*par}:{VF+8*par+3}], v[{P}:{P+3}], v[{O}:{O+15}]")
            for i in range(4): a.I(f"v_cvt_pk_bf16_f32 v{P+4*half+i}, v{b+2*i}, v{b+2*i+1}")
        a.I("s_nop 0")
        a.I(f"v_mfma_f32_32x32x16_bf16 v[{O}:{O+15}], v[{VF+8*par+4}:{VF+8*par+7}], v[{P+4}:{P+7}], v[{O}:{O+15}]")
    a.L("K2_RESTART")
    for i in range(16): a.I(f"v_mov_b32 v{O+i}, 0")
    rdK(0, 0); rdK(1, 2048); rdV(0, 0)
    a.I("s_waitcnt lgkmcnt(0)")
    qk(SA, 0)
    a.I("s_mov_b32 s15, 0")
    a.L("K2_LOOP")
    tile(SA, SB, 0, True, 2, 0)
    tile(SB, SA, 1, True, 2, 2048)
    a.I("""
    v_add_u32 v1, 4096, v1
    v_add_u32 v3, 4096, v3
    s_add_u32 s15, s15, 1
    s_cmp_eq_u32 s15, 2
    s_cbranch_scc0 K2_NOBAR
    s_cmp_lg_u32 s14, 0
    s_cbranch_scc1 K2_NOBAR
    s_waitcnt vmcnt(0)
    s_barrier
    K2_NOBAR:
    s_cmp_lt_u32 s15, 31
    s_cbranch_scc1 K2_LOOP""")
    tile(SA, SB, 0, True, 1, 0)
    tile(SB, SA, 1, False, 0, 2048)
    a.I(f"""
    s_cmp_lg_u32 s14, 0
    s_cbranch_scc1 K2_FIN
    s_nop 7
    v_mov_b32 v9, {hex(f2u(2.0**-24))}
    v_mov_b32 v10, {hex(f2u(2.0**100))}
    v_cmp_ge_f32 vcc, v{O+8}, v9
    v_cmp_le_f32 s[16:17], v{O+8}, v10
    s_and_b64 vcc, vcc, s[16:17]
    s_cmp_eq_u64 vcc, -1
    s_cbranch_scc1 K2_FIN""")
    a.I(f"""
    s_mov_b32 s14, 1
    v_mov_b32 v1, v8
    v_mov_b32 v10, 0xff800000
    s_mov_b32 s15, 0
    K2_MAXLOOP:
    ds_read_b128 v[{KF}:{KF+3}], v1
    s_waitcnt lgkmcnt(0)
    v_mfma_f32_32x32x16_bf16 v[{SA}:{SA+15}], v[{KF}:{KF+3}], v[{Q}:{Q+3}], 0""")
    for i in range(8): a.I(f"v_max3_f32 v10, v10, v{SA+2*i}, v{SA+2*i+1}")
    a.I(f"""
    v_add_u32 v1, 2048, v1
    s_add_u32 s15, s15, 1
    s_cmp_lt_u32 s15, 64
    s_cbranch_scc1 K2_MAXLOOP
    v_mov_b32 v9, v10
    v_permlane32_swap_b32 v10, v9
    v_max_f32 v10, v10, v9
    v_sub_f32 v10, 0, v10""")
    for i in range(16): a.I(f"v_mov_b32 v{CM+i}, v10")
    a.I(f"""
    v_mov_b32 v1, v8
    v_subrev_u32 v3, {31*4096}, v3
    s_branch K2_RESTART""")
    a.L("K2_FIN")
    a.I(f"s_nop 11\nv_rcp_f32 v9, v{O+8}")
    for i in range(8): a.I(f"v_mul_f32 v{O+i}, v{O+i}, v9")
    for i in range(4): a.I(f"v_cvt_pk_bf16_f32 v{P+i}, v{O+2*i}, v{O+2*i+1}")
    a.I(f"""
    s_add_u32 s7, s7, {WS_O}
    buffer_store_dwordx4 v[{P}:{P+3}], v8, s[{SWS}:{SWS+3}], s7 offen
    s_endpgm""")
    a.L("K2_CONV")
    srd(a, SH, P_H, 0x200000); srd(a, SD, P_D, 1024)
    a.I(f"""
    s_sub_u32 s5, s5, 8            ; cw
    s_and_b32 s6, s5, 1
    s_lshr_b32 s7, s5, 1
    s_lshl_b32 s8, s2, 1
    s_add_u32 s8, s8, s6
    s_cmp_eq_u32 s7, 1
    s_cbranch_scc1 K2_STH
    s_lshl_b32 s9, s8, 12
    s_add_u32 s9, s9, {WS_U}
    s_add_u32 s{SU}, s{P_WS}, s9
    s_addc_u32 s{SU+1}, s{P_WS+1}, 0
    s_and_b32 s{SU+1}, s{SU+1}, 0xffff
    s_mov_b32 s{SU+2}, 4096
    s_mov_b32 s{SU+3}, 0x20000
    s_mul_i32 s10, s6, {U_ST}
    s_add_u32 m0, s10, {U_L}
    s_mov_b32 s11, 52429""")
    for q in range(8):
        a.I(f"""
        v_add_u32 v9, {64*q}, v2
        v_mul_lo_u32 v10, v9, s11
        v_lshrrev_b32 v10, 18, v10
        v_mul_u32_u24 v11, 5, v10
        v_sub_u32 v11, v9, v11            ; cc
        v_lshlrev_b32 v10, 6, v10
        v_lshl_add_u32 v10, v11, 4, v10""")
        if q == 7: a.I("s_mov_b64 exec, 0xffffffff")
        a.I(f"buffer_load_dwordx4 v10, s[{SU}:{SU+3}], 0 offen lds")
        if q < 7: a.I("s_add_u32 m0, m0, 1024")
    a.I("s_mov_b64 exec, -1\ns_branch K2_STD")
    a.L("K2_STH")
    a.I(f"""
    s_lshl_b32 s9, s8, 12
    v_mov_b32 v9, 0
    buffer_load_dword v10, v9, s[{SH}:{SH+3}], s9 offen      ; h0,h1
    s_lshl_b32 s10, s8, 1
    buffer_load_ushort v11, v9, s[{SD}:{SD+3}], s10 offen    ; D
    s_mul_i32 s10, s6, {2*H_ST}
    s_add_u32 s10, s10, {H_L}
    s_add_u32 m0, s10, 64
    s_add_u32 s11, s9, 2""")
    for c in (1, 2):
        for q in range(4):
            a.I(f"buffer_load_dwordx4 v8, s[{SH}:{SH+3}], s11 offen offset:{1024*q} lds")
        if c == 1: a.I(f"s_add_u32 m0, m0, {H_ST}\ns_add_u32 s11, s11, 2")
    a.I(f"""
    s_waitcnt vmcnt(8)
    v_lshlrev_b32 v12, 16, v10
    v_lshlrev_b32 v11, 16, v11
    v_add_f32 v12, v12, v11
    v_cvt_pk_bf16_f32 v12, v12, v12
    v_and_b32 v13, 0xffff0000, v12
    v_and_b32 v12, 0xffff, v12
    v_and_b32 v10, 0xffff0000, v10
    v_or_b32 v12, v12, v10
    v_mov_b32 v14, 0
    v_cmp_eq_u32 vcc, 15, v2
    v_cndmask_b32 v14, v14, v13, vcc
    v_cmp_eq_u32 vcc, 31, v2
    v_cndmask_b32 v14, v14, v12, vcc
    v_and_b32 v15, 15, v2
    v_lshlrev_b32 v15, 2, v15
    v_lshrrev_b32 v16, 4, v2
    v_mul_u32_u24 v16, {H_ST}, v16
    v_add3_u32 v15, v15, v16, s10
    s_mov_b64 exec, 0xffffffff
    ds_write_b32 v15, v14
    s_mov_b64 exec, -1""")
    a.L("K2_STD")
    a.I("s_barrier\ns_waitcnt vmcnt(0) lgkmcnt(0)\ns_barrier")
    a.I("s_cmp_eq_u32 s5, 3\ns_cbranch_scc1 K2_END")
    Y, AF, BF = 16, 32, 64
    a.I(f"""
    s_setprio 1
    v_and_b32 v9, 31, v2           ; b / a_local
    v_lshrrev_b32 v10, 5, v2       ; h'
    v_and_b32 v11, 1, v9
    v_mul_u32_u24 v11, {H_ST}, v11
    v_and_b32 v12, 30, v9
    v_lshl_add_u32 v11, v12, 1, v11
    v_lshl_add_u32 v11, v10, 4, v11
    ; B base: 80*(63-a) + 16h'
    v_sub_u32 v12, 31, v9
    v_mul_u32_u24 v12, 80, v12
    v_lshl_add_u32 v12, v10, 4, v12
    v_lshlrev_b32 v13, 6, v9
    v_lshl_add_u32 v13, v10, 3, v13
    s_cmp_eq_u32 s5, 2
    s_cselect_b32 s6, 0, s5
    s_cselect_b32 s7, 8, 16
    s_cselect_b32 s9, {80*32}, 0
    s_cselect_b32 s10, 0, 2048
    s_cselect_b32 s11, 2, 1          ; jobs""")
    a.L("K2_CJOB")
    a.I(f"""
    s_mul_i32 s12, s6, {2*H_ST}
    s_add_u32 s12, s12, {H_L}
    v_add_u32 v14, s12, v11          ; A addr
    s_mul_i32 s12, s6, {U_ST}
    s_add_u32 s12, s12, s9
    s_add_u32 s12, s12, {U_L}
    v_add_u32 v15, s12, v12          ; B addr
    s_mov_b32 s13, 0""")
    for i in range(16): a.I(f"v_mov_b32 v{Y+i}, 0")
    def crd(t, tt):
        a.I(f"ds_read2_b32 v[{AF+4*t}:{AF+4*t+1}], v14 offset0:{8*tt} offset1:{8*tt+1}")
        a.I(f"ds_read2_b32 v[{AF+4*t+2}:{AF+4*t+3}], v14 offset0:{8*tt+2} offset1:{8*tt+3}")
        a.I(f"ds_read_b128 v[{BF+4*t}:{BF+4*t+3}], v15 offset:{80*(tt>>1)+32*(tt&1)}")
    for t in range(4): crd(t, t)
    a.L("K2_CLOOP")
    for t in range(8):
        crd((t + 4) % 8, t + 4)
        a.I("s_waitcnt lgkmcnt(12)")
        a.I(f"v_mfma_f32_32x32x16_bf16 v[{Y}:{Y+15}], v[{AF+4*t}:{AF+4*t+3}], v[{BF+4*t}:{BF+4*t+3}], v[{Y}:{Y+15}]")
    a.I(f"""
    v_add_u32 v14, 256, v14
    v_add_u32 v15, 320, v15
    s_add_u32 s13, s13, 1
    s_cmp_lt_u32 s13, s7
    s_cbranch_scc1 K2_CLOOP
    s_lshl_b32 s12, s2, 1
    s_add_u32 s12, s12, s6
    s_lshl_b32 s12, s12, 12
    s_add_u32 s12, s12, s10
    s_add_u32 s12, s12, {WS_Y}
    s_waitcnt lgkmcnt(0)""")
    for q in range(4):
        a.I(f"v_cvt_pk_bf16_f32 v{AF+2*q}, v{Y+4*q}, v{Y+4*q+1}\nv_cvt_pk_bf16_f32 v{AF+2*q+1}, v{Y+4*q+2}, v{Y+4*q+3}")
    for q in range(4):
        a.I(f"buffer_store_dwordx2 v[{AF+2*q}:{AF+2*q+1}], v13, s[{SWS}:{SWS+3}], s12 offen offset:{16*q}")
    a.I("""
    s_add_u32 s6, s6, 1
    s_sub_u32 s11, s11, 1
    s_cmp_lg_u32 s11, 0
    s_waitcnt vmcnt(0)
    s_cbranch_scc1 K2_CJOB
    K2_END:
    s_endpgm""")
    return kernel_wrap("k2_kernel", a, 112)

def k3():
    a = Asm()
    WO_L, Y_L, RED_L = 0, 65536, 65536 + 8192
    a.I("s_cmp_ge_u32 s2, 256\ns_cbranch_scc1 K3_END")
    load_ptrs(a)
    a.I("""
    s_and_b32 s3, s2, 7
    s_lshl_b32 s3, s3, 2
    s_lshr_b32 s4, s2, 3
    s_and_b32 s4, s4, 3
    s_or_b32 s3, s3, s4            ; r
    s_lshr_b32 s4, s2, 5           ; cg
    v_lshrrev_b32 v1, 6, v0
    v_and_b32 v2, 63, v0           ; lane
    v_readfirstlane_b32 s5, v1
    v_lshlrev_b32 v8, 4, v2
    s_waitcnt lgkmcnt(0)""")
    SWS, SWO, SX, SOUT = 48, 52, 56, 60
    srd(a, SWS, P_WS, WS_SIZE); srd(a, SWO, P_WO, 0x80000); srd(a, SX, P_X, 0x200000); srd(a, SOUT, P_OUT, 0x200000)
    OF = 64
    a.I(f"""
    s_lshr_b32 s6, s5, 1           ; nt
    s_and_b32 s7, s5, 1            ; kz
    v_lshrrev_b32 v9, 1, v2
    v_and_b32 v9, 7, v9            ; slot
    v_lshrrev_b32 v10, 4, v2       ; col16
    v_and_b32 v11, 1, v10
    v_lshlrev_b32 v11, 2, v11
    v_xor_b32 v9, v9, v11          ; row k&7
    v_lshlrev_b32 v9, 10, v9
    v_lshl_or_b32 v9, v10, 5, v9
    v_and_b32 v11, 1, v2
    v_lshl_or_b32 v9, v11, 4, v9   ; voffset
    s_lshl_b32 s8, s5, 17
    s_lshl_b32 s9, s4, 7
    s_add_u32 s8, s8, s9
    s_lshl_b32 s10, s5, 14
    s_mov_b32 m0, s10""")
    for e in range(16):
        a.I(f"buffer_load_dwordx4 v9, s[{SWO}:{SWO+3}], s8 offen lds")
        if e < 15: a.I("s_add_u32 m0, m0, 1024\ns_add_u32 s8, s8, 8192")
    a.I(f"""
    v_lshrrev_b32 v10, 3, v2
    v_lshlrev_b32 v10, 12, v10
    v_and_b32 v11, 7, v2
    v_lshl_or_b32 v10, v11, 4, v10       ; (l>>3)*4096 + (l&7)*16
    s_lshl_b32 s8, s4, 18                ; 64cg*4096
    s_lshl_b32 s9, s5, 16                ; 16w*4096
    s_add_u32 s8, s8, s9
    s_lshl_b32 s9, s3, 7
    s_add_u32 s8, s8, s9
    s_add_u32 s8, s8, {WS_Y}
    s_lshl_b32 s10, s5, 11
    s_add_u32 m0, s10, {Y_L}
    buffer_load_dwordx4 v10, s[{SWS}:{SWS+3}], s8 offen lds
    s_add_u32 m0, m0, 1024
    s_add_u32 s8, s8, 32768
    buffer_load_dwordx4 v10, s[{SWS}:{SWS+3}], s8 offen lds
    s_lshl_b32 s8, s3, 1
    s_add_u32 s8, s8, s6
    s_lshl_b32 s8, s8, 15
    s_lshl_b32 s9, s7, 14
    s_add_u32 s8, s8, s9
    s_add_u32 s8, s8, {WS_O}""")
    for hh in range(16):
        a.I(f"buffer_load_dwordx4 v[{OF+4*hh}:{OF+4*hh+3}], v8, s[{SWS}:{SWS+3}], s8 offen offset:{1024*(hh&3)}")
        if hh & 3 == 3 and hh < 15: a.I("s_add_u32 s8, s8, 4096")
    a.I(f"""
    v_and_b32 v12, 31, v2
    v_lshrrev_b32 v13, 5, v2             ; h
    v_lshlrev_b32 v14, 10, v12
    v_lshl_or_b32 v14, v13, 3, v14       ; row*1024 + h*8
    s_lshl_b32 s8, s3, 16
    s_lshl_b32 s9, s6, 15
    s_add_u32 s8, s8, s9
    s_lshl_b32 s9, s4, 7
    s_add_u32 s8, s8, s9
    s_lshl_b32 s9, s7, 6
    s_add_u32 s11, s8, s9""")
    for q in range(4):
        a.I(f"buffer_load_dwordx2 v[{128+2*q}:{129+2*q}], v14, s[{SX}:{SX+3}], s11 offen offset:{16*q}")
    a.I(f"""
    v_lshlrev_b32 v15, 2, v12
    s_lshl_b32 s8, s3, 8
    s_lshl_b32 s9, s6, 7
    s_add_u32 s8, s8, s9
    s_add_u32 s8, s8, {WS_G}
    buffer_load_dword v136, v15, s[{SWS}:{SWS+3}], s8 offen
    v_and_b32 v16, 15, v2
    v_lshrrev_b32 v17, 2, v16            ; rr
    v_and_b32 v18, 3, v16                ; cc
    v_lshrrev_b32 v19, 4, v2             ; gidx
    v_and_b32 v20, 1, v19                ; gidx&1
    v_xor_b32 v21, v13, v20
    v_lshlrev_b32 v21, 7, v21
    v_lshl_or_b32 v21, v17, 5, v21
    v_lshl_or_b32 v21, v18, 3, v21
    v_lshl_or_b32 v21, v20, 8, v21
    s_lshl_b32 s8, s7, 15
    v_add_u32 v21, s8, v21
    v_lshlrev_b32 v22, 2, v13
    v_add_u32 v22, v22, v17
    v_lshlrev_b32 v22, 7, v22
    v_lshl_or_b32 v22, v20, 5, v22
    v_lshl_or_b32 v22, v18, 3, v22
    s_lshl_b32 s8, s7, 12
    s_lshl_b32 s9, s6, 6
    s_add_u32 s8, s8, s9
    s_add_u32 s8, s8, {Y_L}
    v_add_u32 v22, s8, v22""")
    for i in range(32): a.I(f"v_mov_b32 v{32+i}, 0")
    a.I("s_waitcnt vmcnt(21)\ns_barrier")
    AB = 140
    def wrd(hh):
        b = AB + 8 * (hh % 3)
        for mt in range(2):
            for j in range(2):
                a.I(f"ds_read_b64_tr_b16 v[{b+4*mt+2*j}:{b+4*mt+2*j+1}], v21 offset:{2048*hh + 1024*j + 512*mt}")
    wrd(0); wrd(1)
    for hh in range(16):
        if hh + 2 < 16: wrd(hh + 2)
        a.I(f"s_waitcnt vmcnt({5 + 15 - hh}) lgkmcnt({4*min(2, 15-hh)})")
        b = AB + 8 * (hh % 3)
        for mt in range(2):
            a.I(f"v_mfma_f32_32x32x16_bf16 v[{32+16*mt}:{47+16*mt}], v[{b+4*mt}:{b+4*mt+3}], v[{OF+4*hh}:{OF+4*hh+3}], v[{32+16*mt}:{47+16*mt}]")
    for q in range(4):
        a.I(f"ds_read_b64_tr_b16 v[{64+2*q}:{65+2*q}], v22 offset:{1024*q}")
    a.I(f"""
    s_lshl_b32 s8, s5, 12
    s_add_u32 s8, s8, {RED_L}
    v_add_u32 v23, s8, v8
    s_xor_b32 s8, s5, 1
    s_lshl_b32 s8, s8, 12
    s_add_u32 s8, s8, {RED_L}
    v_add_u32 v24, s8, v8
    s_cmp_eq_u32 s7, 0
    s_cbranch_scc1 K3_S0""")
    for i in range(4): a.I(f"ds_write_b128 v23, v[{32+4*i}:{35+4*i}] offset:{1024*i}")
    for i in range(16): a.I(f"v_mov_b32 v{32+i}, v{48+i}")
    a.I("s_branch K3_S1")
    a.L("K3_S0")
    a.I("s_nop 7")
    for i in range(4): a.I(f"ds_write_b128 v23, v[{48+4*i}:{51+4*i}] offset:{1024*i}")
    a.L("K3_S1")
    a.I("s_waitcnt lgkmcnt(0)\ns_barrier")
    for i in range(4): a.I(f"ds_read_b128 v[{48+4*i}:{51+4*i}], v24 offset:{1024*i}")
    a.I("s_mov_b32 s15, 0xffff0000\ns_waitcnt vmcnt(0)")
    for q in range(4):
        for dd in range(2):
            xr, yr, o = 128 + 2 * q + dd, 64 + 2 * q + dd, 72 + 4 * q + 2 * dd
            a.I(f"""
            v_lshlrev_b32 v88, 16, v{xr}
            v_lshlrev_b32 v89, 16, v{yr}
            v_and_b32 v90, s15, v{xr}
            v_and_b32 v91, s15, v{yr}
            v_mul_f32 v{o}, v88, v89
            v_mul_f32 v{o+1}, v90, v91""")
    a.I("s_waitcnt lgkmcnt(0)")
    for i in range(16): a.I(f"v_add_f32 v{32+i}, v{32+i}, v{48+i}")
    for i in range(16): a.I(f"v_sub_f32 v{72+i}, v{72+i}, v{32+i}")
    for i in range(16): a.I(f"v_fmac_f32 v{32+i}, v136, v{72+i}")
    for i in range(8): a.I(f"v_cvt_pk_bf16_f32 v{48+i}, v{32+2*i}, v{33+2*i}")
    for q in range(4):
        a.I(f"buffer_store_dwordx2 v[{48+2*q}:{49+2*q}], v14, s[{SOUT}:{SOUT+3}], s11 offen offset:{16*q}")
    a.I("K3_END:\ns_endpgm")
    return kernel_wrap("k3_kernel", a, 168)

def main(out):
    ref = open(f"cdna_kernels/{NAME}.s.ref").read()
    hdr = [l for l in ref.split("\n") if l.startswith(";") and "@launch" not in l]
    b1, d1 = k1(); b2, d2 = k2(); b3, d3 = k3()
    s = "\n".join(hdr) + "\n"
    s += f"; @launch kernel=k1_kernel grid=(256,1,1) block=(512,1,1) lds=156672\n"
    s += f"; @launch kernel=k2_kernel grid=(256,1,1) block=(768,1,1) lds={K2_LDS}\n"
    s += f"; @launch kernel=k3_kernel grid=(256,1,1) block=(256,1,1) lds={65536+8192+16384}\n"
    s += '.amdgcn_target "amdgcn-amd-amdhsa--gfx950"\n' + b1 + b2 + b3 + d1 + d2 + d3
    open(out, "w").write(s)

if __name__ == "__main__":
    main(sys.argv[1] if len(sys.argv) > 1 else f"cdna_kernels/{NAME}.s")
```

```python
import sys, struct
from asmlib import Asm

NAME = "gated_mix__ssm_conv_h3__grouped_kv_mqa__prompt"
KNAME = NAME + "_kernel"
WS_O, WS_U, WS_Y, WS_KV = 0x200000, 0x400000, 0x600000, 0x800000
WS_FL1, WS_FL1B, WS_FL2, WS_FL3 = 0x840000, 0x844000, 0x848000, 0x850000
WS_SIZE = 0xA00000
WS_ST = 0x900000
def f2u(x): return struct.unpack("<I", struct.pack("<f", x))[0]
LOG2E = 1.4426950408889634
CSCALE = 0.25 * LOG2E
STAMP = False
SPIN_MAX = 1 << 18
CONV_PF = 4
CONV_PRIO = 3
ATT_PRIOS = [3, 2, 1, 0]

X_L, WQ_L, TB, GW_L, WKV_L = 0, 65536, 131072, 140288, 147456
SM = 146688
SM_G, SM_TAG, SM_KN, SM_CNT = SM, SM + 256, SM + 260, SM + 264
U_L, U_ST = 114688, 7680
H_L, H_ST = U_L + 2 * U_ST, 4160
KV0_L = 147456
WO_L, RED_L = 0, 65536
LDS_BYTES = 163840
assert H_L + 4 * H_ST == SM

P_X, P_K, P_V, P_SH, P_H, P_D, P_WQ, P_WK, P_WV, P_WO, P_GW, P_OUT, P_DBG, P_WS = 16, 18, 20, 22, 24, 26, 30, 32, 34, 36, 38, 40, 42, 44
SWS = 48
S_TAG = 46

def srd(a, d, lo, n):
    a.I(f"""
    s_mov_b32 s{d}, s{lo}
    s_and_b32 s{d+1}, s{lo+1}, 0xffff
    s_mov_b32 s{d+2}, {n}
    s_mov_b32 s{d+3}, 0x20000""")

def stamp(a, idx):
    if STAMP: a.I(f"s_memtime s[{80+2*idx}:{81+2*idx}]")
TAIL = False
def tstamp(a, idx):
    if TAIL: stamp(a, idx)
def stamp_rt(a, idx):
    if STAMP: a.I(f"s_memrealtime s[{80+2*idx}:{81+2*idx}]")
def stamp_flush(a):
    if STAMP:
        a.I("s_waitcnt lgkmcnt(0)\ns_mov_b64 exec, 1")
        a.I(f"s_lshl_b32 s100, s2, 4\ns_add_u32 s100, s100, s5\ns_lshl_b32 s100, s100, 6\ns_add_u32 s100, s100, {WS_ST}")
        a.I("v_mov_b32 v1, 0")
        for i in range(10):
            a.I(f"v_mov_b32 v2, s{80+2*i}\nbuffer_store_dword v2, v1, s[{SWS}:{SWS+3}], s100 offen offset:{4*i}")

def row_reduce(a, op, v):
    for r in (8, 4, 2, 1):
        a.I(f"{op}_dpp v{v}, v{v}, v{v} row_ror:{r} row_mask:0xf bank_mask:0xf")
def cross_rows(a, op, v, t):
    a.I(f"""
    v_mov_b32 v{t}, v{v}
    v_permlane16_swap_b32 v{v}, v{t}
    {op} v{v}, v{v}, v{t}
    v_mov_b32 v{t}, v{v}
    v_permlane32_swap_b32 v{v}, v{t}
    {op} v{v}, v{v}, v{t}""")

_lbl = [0]
def poll(a, loads, checks, sleep=1, cnt="s15"):
    _lbl[0] += 1
    L = f"POLL{_lbl[0]}"
    a.I(f"s_mov_b32 {cnt}, 0")
    a.L(L)
    a.I(loads)
    a.I("s_waitcnt vmcnt(0)")
    a.I(f"v_cmp_ne_u32 vcc, s{S_TAG}, v{checks[0]}")
    for c in checks[1:]:
        a.I(f"v_cmp_ne_u32 s[12:13], s{S_TAG}, v{c}\ns_or_b64 vcc, vcc, s[12:13]")
    a.I(f"""
    s_cmp_eq_u64 vcc, 0
    s_cbranch_scc1 {L}_D
    s_sleep {sleep}
    s_add_u32 {cnt}, {cnt}, 1
    s_cmp_lt_u32 {cnt}, {SPIN_MAX}
    s_cbranch_scc1 {L}
    {L}_D:""")

def store_flag(a, soff_reg, vt0, vt1, aux=None):
    if aux is None:
        a.I(f"""
        v_mov_b32 v{vt0}, s{S_TAG}
        v_mov_b32 v{vt1}, 0
        s_mov_b64 exec, 1
        buffer_store_dword v{vt0}, v{vt1}, s[{SWS}:{SWS+3}], {soff_reg} offen sc1
        s_mov_b64 exec, -1""")

def lds_sync(a, idx, n, vt0, vt1):
    _lbl[0] += 1
    L = f"LS{_lbl[0]}"
    a.I(f"""
    s_waitcnt vmcnt(0) lgkmcnt(0)
    v_mov_b32 v{vt0}, {SM_CNT + 4*idx}
    v_mov_b32 v{vt1}, 1
    s_mov_b64 exec, 1
    ds_add_u32 v{vt0}, v{vt1}
    s_mov_b64 exec, -1
    s_mov_b32 s15, 0
    {L}:
    ds_read_b32 v{vt1}, v{vt0}
    s_waitcnt lgkmcnt(0)
    v_readfirstlane_b32 s14, v{vt1}
    s_cmp_ge_u32 s14, {n}
    s_cbranch_scc1 {L}_D
    s_sleep 1
    s_add_u32 s15, s15, 1
    s_cmp_lt_u32 s15, {SPIN_MAX}
    s_cbranch_scc1 {L}
    {L}_D:""")

def xfrag_bases(a, ve, vo, t0, t1, t2):
    a.I(f"""
    v_and_b32 v{t0}, 7, v2               ; j
    v_lshrrev_b32 v{t1}, 4, v2           ; g
    v_xor_b32 v{t1}, v{t1}, v{t0}
    v_lshlrev_b32 v{ve}, 4, v{t1}
    v_lshl_or_b32 v{ve}, v{t0}, 7, v{ve}
    v_bfe_u32 v{t2}, v2, 3, 1
    v_lshl_or_b32 v{ve}, v{t2}, 13, v{ve}
    v_xor_b32 v{vo}, 64, v{ve}""")

def gen():
    a = Asm()
    a.I("s_cmp_ge_u32 s2, 256\ns_cbranch_scc1 L_END")
    stamp(a, 0); stamp_rt(a, 8)
    a.I("""
    s_load_dwordx16 s[16:31], s[0:1], 0
    s_load_dwordx8 s[32:39], s[0:1], 64
    s_load_dwordx4 s[40:43], s[0:1], 96
    s_load_dwordx2 s[44:45], s[0:1], 112
    v_lshrrev_b32 v1, 6, v0
    v_and_b32 v2, 63, v0           ; lane
    v_readfirstlane_b32 s5, v1     ; wave
    s_and_b32 s3, s2, 7
    s_lshl_b32 s3, s3, 2
    s_lshr_b32 s4, s2, 3
    s_and_b32 s4, s4, 3
    s_or_b32 s3, s3, s4            ; r
    s_lshr_b32 s4, s2, 5           ; hg
    v_lshlrev_b32 v8, 4, v2        ; lane*16
    v_lshrrev_b32 v3, 3, v2
    v_and_b32 v4, 7, v2
    v_xor_b32 v5, v3, v4
    v_lshlrev_b32 v5, 4, v5
    v_lshl_or_b32 v5, v3, 10, v5   ; x voffset
    s_cmp_ge_u32 s5, 4
    s_cbranch_scc1 L_ATT
    s_cmp_lg_u32 s5, 0
    s_cbranch_scc1 L_H123""")
    SX, SWKV, SDBG = 52, 56, 60
    a.I(f"""
    s_and_b32 s10, s4, 3                 ; i
    s_lshl_b32 s11, s3, 16
    s_lshl_b32 s12, s10, 14
    s_add_u32 s11, s11, s12              ; (64r+16i)*1024
    s_mov_b32 m0, s12
    v_lshrrev_b32 v37, 1, v2             ; pos
    v_and_b32 v38, 0x13, v37
    v_and_b32 v39, 4, v37
    v_lshl_or_b32 v38, v39, 1, v38
    v_and_b32 v39, 8, v37
    v_lshrrev_b32 v39, 1, v39
    v_or_b32 v38, v38, v39               ; swap23(pos)
    v_lshlrev_b32 v38, 5, v38
    v_and_b32 v39, 1, v2
    v_lshl_or_b32 v38, v39, 4, v38
    s_waitcnt lgkmcnt(0)""")
    srd(a, SDBG, P_DBG, 256)
    a.I(f"""
    v_mov_b32 v9, 0
    s_cmp_lg_u32 s2, 0
    s_cbranch_scc1 L_H0_NOTAG
    s_memrealtime s[14:15]
    s_waitcnt lgkmcnt(0)
    s_or_b32 s14, s14, 1
    v_mov_b32 v10, s14
    s_mov_b64 exec, 1
    buffer_store_dword v10, v9, s[{SDBG}:{SDBG+3}], 0 offen sc1
    s_mov_b64 exec, -1
    L_H0_NOTAG:""")
    srd(a, SX, P_X, 0x200000)
    for e in range(16):
        a.I(f"buffer_load_dwordx4 v5, s[{SX}:{SX+3}], s11 offen offset:{128*(e&7)} lds")
        if e == 7: a.I("s_add_u32 s11, s11, 8192\ns_add_u32 m0, m0, %d" % (8192 - 7 * 896))
        elif e < 15: a.I("s_add_u32 m0, m0, 896")
    a.I(f"""
    s_cmp_lt_u32 s4, 4
    s_cselect_b32 s{SWKV}, s{P_WK}, s{P_WV}
    s_cselect_b32 s{SWKV+1}, s{P_WK+1}, s{P_WV+1}
    s_and_b32 s{SWKV+1}, s{SWKV+1}, 0xffff
    s_mov_b32 s{SWKV+2}, 16384
    s_mov_b32 s{SWKV+3}, 0x20000
    s_mov_b32 m0, {WKV_L}
    s_mov_b32 s13, 0""")
    for e in range(16):
        a.I(f"buffer_load_dwordx4 v38, s[{SWKV}:{SWKV+3}], s13 offen offset:{1024*(e&3)} lds")
        if e & 3 == 3 and e < 15: a.I("s_add_u32 m0, m0, 4096\ns_add_u32 s13, s13, 4096")
    srd(a, SWKV, P_GW, 1024)
    a.I(f"s_mov_b32 m0, {GW_L}\ns_nop 0\nbuffer_load_dwordx4 v8, s[{SWKV}:{SWKV+3}], 0 offen lds")
    srd(a, SWS, P_WS, WS_SIZE)
    xfrag_bases(a, 6, 7, 10, 11, 12)
    a.I(f"""
    v_add_u32 v20, s12, v6
    v_add_u32 v21, s12, v7
    v_and_b32 v10, 15, v2                ; n
    v_lshrrev_b32 v11, 4, v2             ; g
    v_lshrrev_b32 v13, 2, v10            ; rr
    v_and_b32 v14, 3, v10                ; cc
    v_lshlrev_b32 v15, 3, v14
    v_lshl_or_b32 v15, v13, 5, v15
    v_and_b32 v16, 1, v11
    v_lshrrev_b32 v19, 1, v11
    v_lshlrev_b32 v19, 9, v19
    v_lshl_or_b32 v19, v16, 7, v19
    v_or_b32 v19, v19, v15
    s_mov_b32 s13, {WKV_L}
    v_add_u32 v19, s13, v19
    v_mov_b32 v22, {SM_CNT}
    v_mov_b32 v24, 0
    v_mov_b32 v25, 0
    v_mov_b32 v26, 0
    v_mov_b32 v27, 0
    ds_write_b64 v22, v[24:25]
    ds_write_b64 v22, v[24:25] offset:8
    s_mov_b32 s15, 0
    L_H0_TAG:
    buffer_load_dword v23, v9, s[{SDBG}:{SDBG+3}], 0 offen sc1
    s_waitcnt vmcnt(0)
    v_readfirstlane_b32 s{S_TAG}, v23
    s_add_u32 s15, s15, 1
    s_cmp_ge_u32 s15, {SPIN_MAX}
    s_cbranch_scc1 L_H0_GOT
    s_cmp_eq_u32 s{S_TAG}, 0
    s_cbranch_scc1 L_H0_TAG
    L_H0_GOT:""")
    stamp(a, 1)
    a.I(f"v_mov_b32 v22, {SM_TAG}\nds_write_b32 v22, v23")
    def kv_reads(s):
        b = 32 + 8 * (s % 4)
        a.I(f"ds_read_b128 v[{b}:{b+3}], v{20 + (s & 1)} offset:{1024*(s>>1)}")
        a.I(f"ds_read_b64_tr_b16 v[{b+4}:{b+5}], v19 offset:{1024*s}")
        a.I(f"ds_read_b64_tr_b16 v[{b+6}:{b+7}], v19 offset:{1024*s+256}")
    a.I(f"""
    s_lshr_b32 s11, s10, 1
    s_lshl_b32 s12, s3, 1
    s_add_u32 s11, s11, s12
    s_lshl_b32 s11, s11, 11              ; T*2048
    s_and_b32 s12, s10, 1                ; kk
    s_lshl_b32 s13, s2, 5
    s_add_u32 s13, s13, {WS_FL1}
    s_waitcnt lgkmcnt(0)
    s_cmp_ge_u32 s4, 4
    s_cbranch_scc1 L_H0_V""")
    for isv in (0, 1):
        if isv: a.L("L_H0_V")
        for s in range(3): kv_reads(s)
        for s in range(16):
            if s + 3 < 16: kv_reads(s + 3)
            a.I(f"s_waitcnt lgkmcnt({3*min(3, 15-s)})")
            b = 32 + 8 * (s % 4)
            if isv: a.I(f"v_mfma_f32_16x16x32_bf16 v[24:27], v[{b}:{b+3}], v[{b+4}:{b+7}], v[24:27]")
            else:   a.I(f"v_mfma_f32_16x16x32_bf16 v[24:27], v[{b+4}:{b+7}], v[{b}:{b+3}], v[24:27]")
        if not isv:
            a.I(f"""
            v_lshrrev_b32 v30, 1, v11
            v_lshlrev_b32 v30, 9, v30
            v_lshl_or_b32 v30, v10, 4, v30
            v_lshl_or_b32 v30, v16, 3, v30
            s_lshl_b32 s12, s12, 8
            s_add_u32 s11, s11, s12
            s_add_u32 s11, s11, {WS_KV}
            s_mov_b32 s14, {hex(f2u(CSCALE))}""")
            for i in range(4): a.I(f"v_mul_f32 v{24+i}, s14, v{24+i}")
            a.I(f"""
            v_cvt_pk_bf16_f32 v28, v24, v25
            v_cvt_pk_bf16_f32 v29, v26, v27
            buffer_store_dwordx2 v[28:29], v30, s[{SWS}:{SWS+3}], s11 offen sc1
            v_mov_b32 v32, 0
            v_dot2_f32_bf16 v32, v28, v28, v32
            v_dot2_f32_bf16 v32, v29, v29, v32
            s_nop 2""")
            cross_rows(a, "v_add_f32", 32, 33)
            row_reduce(a, "v_max_f32", 32)
            a.I("s_branch L_H0_FLAG")
        else:
            a.I(f"""
            v_lshrrev_b32 v30, 1, v11
            v_lshlrev_b32 v30, 3, v30
            v_lshl_or_b32 v30, v10, 4, v30
            v_lshl_or_b32 v30, v16, 8, v30
            s_lshl_b32 s12, s12, 9
            s_add_u32 s11, s11, s12
            s_add_u32 s11, s11, {WS_KV + 1024}
            v_cvt_pk_bf16_f32 v28, v24, v25
            v_cvt_pk_bf16_f32 v29, v26, v27
            buffer_store_dwordx2 v[28:29], v30, s[{SWS}:{SWS+3}], s11 offen sc1
            v_mov_b32 v32, 0""")
    a.L("L_H0_FLAG")
    stamp(a, 2)
    a.I(f"""
    v_mov_b32 v33, s{S_TAG}
    s_waitcnt vmcnt(0)
    s_mov_b64 exec, 1
    buffer_store_dwordx2 v[32:33], v9, s[{SWS}:{SWS+3}], s13 offen sc1
    s_mov_b64 exec, -1""")
    stamp(a, 3)
    a.I(f"v_lshlrev_b32 v19, 4, v11\nv_add_u32 v19, {GW_L}, v19")
    for i in range(16): a.I(f"v_mov_b32 v{96+i}, 0")
    a.I("s_waitcnt lgkmcnt(0)\ns_barrier")
    def g_reads(s):
        b = 32 + 20 * (s % 3)
        a.I(f"ds_read_b128 v[{b}:{b+3}], v19 offset:{64*s}")
        for t in range(4):
            a.I(f"ds_read_b128 v[{b+4+4*t}:{b+7+4*t}], v{6+(s&1)} offset:{1024*(s>>1)+16384*t}")
    for s in range(2): g_reads(s)
    for s in range(16):
        if s + 2 < 16: g_reads(s + 2)
        a.I(f"s_waitcnt lgkmcnt({5*min(2, 15-s)})")
        b = 32 + 20 * (s % 3)
        for t in range(4):
            a.I(f"v_mfma_f32_16x16x32_bf16 v[{96+4*t}:{99+4*t}], v[{b}:{b+3}], v[{b+4+4*t}:{b+7+4*t}], v[{96+4*t}:{99+4*t}]")
    a.I(f"""
    v_cmp_eq_u32 vcc, 1, v11
    v_cndmask_b32 v24, v96, v100, vcc
    v_cmp_eq_u32 vcc, 2, v11
    v_cndmask_b32 v24, v24, v104, vcc
    v_cmp_eq_u32 vcc, 3, v11
    v_cndmask_b32 v24, v24, v108, vcc
    v_mul_f32 v24, {hex(f2u(-LOG2E))}, v24
    v_exp_f32 v24, v24
    v_add_f32 v24, 1.0, v24
    v_rcp_f32 v24, v24
    v_lshlrev_b32 v25, 2, v2
    v_add_u32 v25, {SM_G}, v25
    ds_write_b32 v25, v24
    s_waitcnt lgkmcnt(0)
    s_barrier                                ; START
    s_branch L_HB""")
    a.L("L_H123")
    SGW = 52
    a.I("s_waitcnt lgkmcnt(0)")
    srd(a, SWS, P_WS, WS_SIZE)
    a.I("s_cmp_lg_u32 s5, 1\ns_cbranch_scc1 L_H23")
    a.I(f"""
    v_lshlrev_b32 v9, 5, v2              ; lane*32
    v_mov_b32 v10, {SM_TAG}
    s_mov_b32 s10, {WS_FL1}
    s_mov_b32 s11, {WS_FL1 + 4096}
    s_barrier
    ds_read_b32 v11, v10
    s_waitcnt lgkmcnt(0)
    v_readfirstlane_b32 s{S_TAG}, v11""")
    stamp(a, 1)
    poll(a, f"""
    buffer_load_dwordx2 v[12:13], v9, s[{SWS}:{SWS+3}], s10 offen sc1
    buffer_load_dwordx2 v[14:15], v9, s[{SWS}:{SWS+3}], s10 offen offset:2048 sc1
    buffer_load_dwordx2 v[16:17], v9, s[{SWS}:{SWS+3}], s11 offen sc1
    buffer_load_dwordx2 v[18:19], v9, s[{SWS}:{SWS+3}], s11 offen offset:2048 sc1""", [13, 15, 17, 19], sleep=1)
    stamp(a, 2)
    a.I(f"s_mov_b32 m0, {KV0_L}\ns_lshl_b32 s10, s2, 11\ns_and_b32 s10, s10, 0x1c000\ns_add_u32 s10, s10, {WS_KV}")
    for e in range(16):
        a.I(f"buffer_load_dwordx4 v8, s[{SWS}:{SWS+3}], s10 offen offset:{1024*(e&3)} sc1 lds")
        if e & 3 == 3 and e < 15: a.I("s_add_u32 m0, m0, 4096\ns_add_u32 s10, s10, 4096")
    a.I("v_max3_f32 v12, v12, v14, v16\nv_max_f32 v12, v12, v18")
    row_reduce(a, "v_max_f32", 12); cross_rows(a, "v_max_f32", 12, 13)
    a.I(f"""
    v_mov_b32 v10, {SM_KN}
    ds_write_b32 v10, v12
    s_waitcnt vmcnt(0) lgkmcnt(0)""")
    stamp(a, 3)
    a.I("s_barrier\ns_branch L_HB")
    a.L("L_H23")
    a.I(f"""
    v_mov_b32 v10, {SM_TAG}
    s_barrier
    ds_read_b32 v11, v10
    s_waitcnt lgkmcnt(0)
    v_readfirstlane_b32 s{S_TAG}, v11
    s_barrier""")
    a.L("L_HB")
    a.I("s_setprio 3")
    stamp(a, 4)
    SH, SU, SD, SWO, SX2, SOUT = 52, 56, 60, 64, 68, 72
    srd(a, SH, P_H, 0x200000); srd(a, SD, P_D, 1024)
    a.I(f"""
    s_and_b32 s6, s5, 1
    s_lshl_b32 s8, s2, 1
    s_add_u32 s8, s8, s6
    s_lshl_b32 s9, s8, 12
    s_cmp_lt_u32 s5, 2
    s_cbranch_scc1 L_HB_U
    v_mov_b32 v9, 0
    buffer_load_dword v10, v9, s[{SH}:{SH+3}], s9 offen      ; h0,h1
    s_lshl_b32 s10, s8, 1
    buffer_load_ushort v11, v9, s[{SD}:{SD+3}], s10 offen    ; D
    s_mul_i32 s10, s6, {2*H_ST}
    s_add_u32 s10, s10, {H_L}
    s_add_u32 m0, s10, 64
    s_add_u32 s11, s9, 2""")
    for c in (1, 2):
        for q in range(4):
            a.I(f"buffer_load_dwordx4 v8, s[{SH}:{SH+3}], s11 offen offset:{1024*q} lds")
        if c == 1: a.I(f"s_add_u32 m0, m0, {H_ST}\ns_add_u32 s11, s11, 2")
    a.I(f"""
    s_barrier                             ; REST
    s_waitcnt vmcnt(8)
    v_lshlrev_b32 v12, 16, v10
    v_lshlrev_b32 v11, 16, v11
    v_add_f32 v12, v12, v11
    v_cvt_pk_bf16_f32 v12, v12, v12
    v_and_b32 v13, 0xffff0000, v12
    v_and_b32 v12, 0xffff, v12
    v_and_b32 v10, 0xffff0000, v10
    v_or_b32 v12, v12, v10
    v_mov_b32 v14, 0
    v_cmp_eq_u32 vcc, 15, v2
    v_cndmask_b32 v14, v14, v13, vcc
    v_cmp_eq_u32 vcc, 31, v2
    v_cndmask_b32 v14, v14, v12, vcc
    v_and_b32 v15, 15, v2
    v_lshlrev_b32 v15, 2, v15
    v_lshrrev_b32 v16, 4, v2
    v_mul_u32_u24 v16, {H_ST}, v16
    v_add3_u32 v15, v15, v16, s10
    s_mov_b64 exec, 0xffffffff
    ds_write_b32 v15, v14
    s_mov_b64 exec, -1
    s_branch L_HB_S""")
    a.L("L_HB_U")
    a.I(f"""
    s_add_u32 s9, s9, {WS_U}
    s_add_u32 s{SU}, s{P_WS}, s9
    s_addc_u32 s{SU+1}, s{P_WS+1}, 0
    s_and_b32 s{SU+1}, s{SU+1}, 0xffff
    s_mov_b32 s{SU+2}, 4096
    s_mov_b32 s{SU+3}, 0x20000
    s_mov_b32 s11, 52429""")
    for q in range(8):
        a.I(f"""
        v_add_u32 v9, {64*q}, v2
        v_mul_lo_u32 v10, v9, s11
        v_lshrrev_b32 v10, 18, v10
        v_mul_u32_u24 v11, 5, v10
        v_sub_u32 v11, v9, v11
        v_lshlrev_b32 v10, 6, v10
        v_lshl_add_u32 v{20+q}, v11, 4, v10""")
    a.I(f"""
    v_and_b32 v9, 31, v2
    v_lshlrev_b32 v9, 5, v9
    s_lshr_b32 s10, s2, 5
    s_lshl_b32 s10, s10, 10
    s_add_u32 s10, s10, {WS_FL1B}
    s_lshl_b32 s13, s4, 5
    s_add_u32 s13, s13, s3
    s_lshl_b32 s13, s13, 5
    s_add_u32 s13, s13, {WS_FL1B}
    s_barrier                             ; REST
    s_cmp_lg_u32 s5, 0
    s_cbranch_scc1 L_HB_U2""")
    store_flag(a, "s13", 10, 11)
    a.L("L_HB_U2")
    poll(a, f"buffer_load_dword v12, v9, s[{SWS}:{SWS+3}], s10 offen sc1", [12], sleep=4)
    a.I(f"s_mul_i32 s10, s6, {U_ST}\ns_add_u32 m0, s10, {U_L}")
    for q in range(8):
        if q == 7: a.I("s_mov_b64 exec, 0xffffffff")
        a.I(f"buffer_load_dwordx4 v{20+q}, s[{SU}:{SU+3}], 0 offen sc1 lds")
        if q < 7: a.I("s_add_u32 m0, m0, 1024")
    a.I("s_mov_b64 exec, -1")
    a.L("L_HB_S")
    lds_sync(a, 0, 4, 9, 10)
    stamp(a, 5)
    srd(a, SWO, P_WO, 0x80000)
    a.I("s_cmp_eq_u32 s5, 3\ns_cbranch_scc1 L_CONV_DONE")
    Y, AF, BF = 16, 32, 64
    a.I(f"""
    v_and_b32 v9, 31, v2
    v_lshrrev_b32 v10, 5, v2
    v_and_b32 v11, 1, v9
    v_mul_u32_u24 v11, {H_ST}, v11
    v_and_b32 v12, 30, v9
    v_lshl_add_u32 v11, v12, 1, v11
    v_lshl_add_u32 v11, v10, 4, v11
    v_sub_u32 v12, 31, v9
    v_mul_u32_u24 v12, 80, v12
    v_lshl_add_u32 v12, v10, 4, v12
    v_lshlrev_b32 v13, 6, v9
    v_lshl_add_u32 v13, v10, 4, v13
    s_cmp_eq_u32 s5, 2
    s_cselect_b32 s6, 0, s5
    s_cselect_b32 s7, 8, 16
    s_cselect_b32 s9, {80*32}, 0
    s_cselect_b32 s10, 0, 2048
    s_cselect_b32 s11, 2, 1""")
    a.L("L_CJOB")
    a.I(f"""
    s_mul_i32 s12, s6, {2*H_ST}
    s_add_u32 s12, s12, {H_L}
    v_add_u32 v14, s12, v11
    s_mul_i32 s12, s6, {U_ST}
    s_add_u32 s12, s12, s9
    s_add_u32 s12, s12, {U_L}
    v_add_u32 v15, s12, v12
    s_mov_b32 s13, 0""")
    for i in range(16): a.I(f"v_mov_b32 v{Y+i}, 0")
    def crd(t, tt):
        a.I(f"ds_read2_b32 v[{AF+4*t}:{AF+4*t+1}], v14 offset0:{8*tt} offset1:{8*tt+1}")
        a.I(f"ds_read2_b32 v[{AF+4*t+2}:{AF+4*t+3}], v14 offset0:{8*tt+2} offset1:{8*tt+3}")
        a.I(f"ds_read_b128 v[{BF+4*t}:{BF+4*t+3}], v15 offset:{80*(tt>>1)+32*(tt&1)}")
    a.I(f"s_setprio {CONV_PRIO}")
    for t in range(CONV_PF): crd(t, t)
    a.L("L_CLOOP")
    for t in range(8):
        crd((t + CONV_PF) % 8, t + CONV_PF)
        a.I(f"s_waitcnt lgkmcnt({3*CONV_PF})")
        a.I(f"v_mfma_f32_32x32x16_bf16 v[{Y}:{Y+15}], v[{AF+4*t}:{AF+4*t+3}], v[{BF+4*t}:{BF+4*t+3}], v[{Y}:{Y+15}]")
    a.I(f"""
    v_add_u32 v14, 256, v14
    v_add_u32 v15, 320, v15
    s_add_u32 s13, s13, 1
    s_cmp_lt_u32 s13, s7
    s_cbranch_scc1 L_CLOOP
    s_setprio 3
    s_lshl_b32 s12, s2, 1
    s_add_u32 s12, s12, s6               ; channel
    s_lshl_b32 s13, s12, 4
    s_lshl_b32 s14, s10, 2
    s_add_u32 s13, s13, s14
    s_add_u32 s13, s13, {WS_FL2}
    s_lshl_b32 s12, s12, 12
    s_add_u32 s12, s12, s10
    s_add_u32 s12, s12, {WS_Y}
    s_waitcnt lgkmcnt(0)""")
    for q in range(4):
        a.I(f"v_cvt_pk_bf16_f32 v{AF+2*q}, v{Y+4*q}, v{Y+4*q+1}\nv_cvt_pk_bf16_f32 v{AF+2*q+1}, v{Y+4*q+2}, v{Y+4*q+3}")
    for pr in range(2):
        a.I(f"v_permlane32_swap_b32 v{AF+4*pr}, v{AF+4*pr+2}\nv_permlane32_swap_b32 v{AF+4*pr+1}, v{AF+4*pr+3}")
    for pr in range(2):
        a.I(f"buffer_store_dwordx4 v[{AF+4*pr}:{AF+4*pr+3}], v13, s[{SWS}:{SWS+3}], s12 offen offset:{32*pr} sc1")
    a.I("s_waitcnt vmcnt(0)")
    store_flag(a, "s13", 16, 17)
    a.I("""
    s_add_u32 s6, s6, 1
    s_sub_u32 s11, s11, 1
    s_cmp_lg_u32 s11, 0
    s_cbranch_scc1 L_CJOB""")
    a.L("L_CONV_DONE")
    stamp(a, 6)
    a.I(f"""
    v_and_b32 v9, 2, v3
    v_lshlrev_b32 v9, 1, v9
    v_xor_b32 v9, v9, v4
    v_lshlrev_b32 v9, 4, v9
    v_lshl_or_b32 v9, v3, 10, v9
    s_lshl_b32 s8, s5, 17
    s_lshl_b32 s9, s4, 7
    s_add_u32 s8, s8, s9""")
    for e in range(16):
        a.I(f"buffer_load_dwordx4 v[{64+4*e}:{67+4*e}], v9, s[{SWO}:{SWO+3}], s8 offen")
        if e < 15: a.I("s_add_u32 s8, s8, 8192")
    srd(a, SX2, P_X, 0x200000); srd(a, SOUT, P_OUT, 0x200000)
    a.I(f"""
    s_lshr_b32 s6, s5, 1           ; nt
    s_and_b32 s7, s5, 1
    v_and_b32 v12, 31, v2
    v_lshrrev_b32 v13, 5, v2       ; h
    v_lshlrev_b32 v14, 10, v12
    v_lshl_or_b32 v14, v13, 3, v14 ; row*1024 + h*8
    s_lshl_b32 s8, s3, 16
    s_lshl_b32 s9, s6, 15
    s_add_u32 s8, s8, s9
    s_lshl_b32 s9, s4, 7
    s_add_u32 s8, s8, s9
    s_lshl_b32 s9, s7, 6
    s_add_u32 s47, s8, s9""")
    for q in range(4):
        a.I(f"buffer_load_dwordx2 v[{128+2*q}:{129+2*q}], v14, s[{SX2}:{SX2+3}], s47 offen offset:{16*q}")
    a.I(f"""
    s_lshl_b32 s8, s6, 7
    s_add_u32 s8, s8, {SM_G}
    v_lshlrev_b32 v15, 2, v12
    v_add_u32 v15, s8, v15
    ds_read_b32 v136, v15          ; g
    v_lshlrev_b32 v15, 4, v12
    s_lshr_b32 s8, s3, 4
    s_lshl_b32 s8, s8, 13
    s_lshl_b32 s9, s4, 10
    s_add_u32 s8, s8, s9
    s_lshl_b32 s9, s7, 9
    s_add_u32 s8, s8, s9
    s_add_u32 s10, s8, {WS_FL2}""")
    lds_sync(a, 1, 4, 16, 17)
    poll(a, f"buffer_load_dword v16, v15, s[{SWS}:{SWS+3}], s10 offen sc1", [16], sleep=8)
    a.I(f"""
    v_lshrrev_b32 v16, 2, v2
    v_lshlrev_b32 v16, 12, v16
    v_and_b32 v17, 3, v2
    v_lshl_or_b32 v16, v17, 4, v16       ; (l>>2)*4096 + (l&3)*16
    s_lshl_b32 s8, s4, 18
    s_lshl_b32 s9, s7, 17
    s_add_u32 s8, s8, s9
    s_lshl_b32 s9, s3, 7
    s_add_u32 s8, s8, s9
    s_lshl_b32 s9, s6, 6
    s_add_u32 s8, s8, s9
    s_add_u32 s8, s8, {WS_Y}
    s_lshl_b32 s10, s5, 11
    s_add_u32 s10, s10, {U_L}
    s_mov_b32 m0, s10
    s_add_u32 s9, s8, 65536
    buffer_load_dwordx4 v16, s[{SWS}:{SWS+3}], s8 offen sc1 lds
    s_add_u32 m0, m0, 1024
    v_and_b32 v16, 15, v2
    buffer_load_dwordx4 v16, s[{SWS}:{SWS+3}], s9 offen sc1 lds""".replace("""    v_and_b32 v16, 15, v2
    buffer_load""", """    s_nop 0
    buffer_load"""))
    a.I(f"""
    v_and_b32 v16, 15, v2
    v_lshrrev_b32 v17, 2, v16            ; rr
    v_and_b32 v18, 3, v16                ; cc
    v_bfe_u32 v20, v2, 4, 1              ; g1
    v_lshlrev_b32 v22, 2, v13
    v_add_u32 v22, v22, v17
    v_lshlrev_b32 v22, 6, v22
    v_lshl_or_b32 v22, v20, 5, v22
    v_lshl_or_b32 v22, v18, 3, v22
    v_add_u32 v22, s10, v22
    v_lshlrev_b32 v21, 2, v13
    v_add_u32 v21, v21, v17
    v_lshlrev_b32 v21, 7, v21
    v_lshrrev_b32 v23, 1, v18
    v_lshl_or_b32 v23, v20, 1, v23
    v_lshrrev_b32 v24, 1, v17
    v_lshl_or_b32 v23, v24, 2, v23
    v_lshl_or_b32 v21, v23, 4, v21
    v_and_b32 v23, 1, v18
    v_lshl_or_b32 v21, v23, 3, v21
    s_lshl_b32 s8, s7, 15
    v_add_u32 v21, s8, v21
    v_xor_b32 v19, 64, v21
    s_mov_b32 s15, 0xffff0000
    s_waitcnt vmcnt(0)""")
    for q in range(4):
        a.I(f"ds_read_b64_tr_b16 v[{64+2*q}:{65+2*q}], v22 offset:{512*q}")
    a.I("s_waitcnt lgkmcnt(0)")
    GP = 140
    for q in range(4):
        for dd in range(2):
            xr, yr, o = 128 + 2 * q + dd, 64 + 2 * q + dd, GP + 4 * q + 2 * dd
            a.I(f"""
            v_lshlrev_b32 v88, 16, v{xr}
            v_lshlrev_b32 v89, 16, v{yr}
            v_and_b32 v90, s15, v{xr}
            v_and_b32 v91, s15, v{yr}
            v_mul_f32 v{o}, v88, v89
            v_mul_f32 v{o+1}, v90, v91""")
    for i in range(16): a.I(f"v_mul_f32 v{GP+i}, v136, v{GP+i}")
    a.I("v_sub_f32 v136, 1.0, v136")
    for i in range(32): a.I(f"v_mov_b32 v{32+i}, 0")
    a.I(f"""
    s_lshl_b32 s8, s3, 1
    s_add_u32 s8, s8, s6
    s_lshl_b32 s8, s8, 15
    s_lshl_b32 s9, s7, 14
    s_add_u32 s8, s8, s9
    s_add_u32 s8, s8, {WS_O}
    s_lshl_b32 s10, s3, 10
    s_lshl_b32 s11, s7, 9
    s_add_u32 s10, s10, s11
    s_add_u32 s10, s10, {WS_FL3}         ; FL3[r][4kz..]
    v_and_b32 v15, 3, v2
    v_lshlrev_b32 v15, 7, v15
    s_lshl_b32 s9, s5, 12
    s_add_u32 s9, s9, {RED_L}
    v_add_u32 v23, s9, v8
    s_xor_b32 s9, s9, 4096
    v_add_u32 v24, s9, v8
    v_mov_b32 v17, {SM_CNT + 12}
    s_mov_b32 s20, 0                     ; issued
    s_mov_b32 s21, 0                     ; done
    s_mov_b32 s15, 0""")
    stamp(a, 7)
    OF = 64
    ABS = [128, 156, 0]
    a.L("L_TAIL")
    a.I(f"""
    buffer_load_dword v16, v15, s[{SWS}:{SWS+3}], s10 offen sc1
    ds_read_b32 v18, v17
    s_waitcnt vmcnt(0) lgkmcnt(0)
    v_cmp_eq_u32 vcc, s{S_TAG}, v16
    v_readfirstlane_b32 s22, v18
    s_andn2_b32 s23, s20, s21
    s_and_b32 s24, vcc_lo, 15
    s_andn2_b32 s24, s24, s20            ; new
    s_or_b32 s20, s20, s24
    s_cmp_eq_u32 s22, 8
    s_cselect_b32 s23, s23, 0
    s_or_b32 s21, s21, s23
    s_or_b32 s25, s23, s24
    s_cmp_eq_u32 s25, 0
    s_cbranch_scc1 L_T_IDLE""")
    for g in range(4):
        a.I(f"s_bitcmp0_b32 s24, {g}\ns_cbranch_scc1 L_TL{g}")
        a.I(f"s_add_u32 s9, s8, {4096*g}")
        for hh in range(4 * g, 4 * g + 4):
            a.I(f"buffer_load_dwordx4 v[{OF+4*hh}:{OF+4*hh+3}], v8, s[{SWS}:{SWS+3}], s9 offen offset:{1024*(hh&3)} sc1")
        a.L(f"L_TL{g}")
    def wrd(hh):
        b = ABS[hh % 3]
        for mt in range(2):
            for j in range(2):
                a.I(f"ds_read_b64_tr_b16 v[{b+4*mt+2*j}:{b+4*mt+2*j+1}], v{21 if mt == 0 else 19} offset:{2048*hh + 1024*j}")
    for g in range(4):
        a.I(f"s_bitcmp0_b32 s23, {g}\ns_cbranch_scc1 L_TM{g}")
        h0 = 4 * g
        wrd(h0); wrd(h0 + 1)
        for hh in range(h0, h0 + 4):
            if hh + 2 < h0 + 4: wrd(hh + 2)
            a.I(f"s_waitcnt lgkmcnt({4*min(2, h0+3-hh)})")
            b = ABS[hh % 3]
            for mt in range(2):
                a.I(f"v_mfma_f32_32x32x16_bf16 v[{32+16*mt}:{47+16*mt}], v[{b+4*mt}:{b+4*mt+3}], v[{OF+4*hh}:{OF+4*hh+3}], v[{32+16*mt}:{47+16*mt}]")
        a.L(f"L_TM{g}")
    a.I(f"""
    s_cmp_eq_u32 s21, 15
    s_cbranch_scc1 L_T_DONE
    s_branch L_TAIL
    L_T_IDLE:
    s_sleep 1
    s_add_u32 s15, s15, 1
    s_cmp_lt_u32 s15, {SPIN_MAX}
    s_cbranch_scc1 L_TAIL
    L_T_DONE:""")
    tstamp(a, 2)
    a.I("s_cmp_eq_u32 s7, 0\ns_cbranch_scc1 L_S0\ns_nop 9")
    for i in range(4): a.I(f"ds_write_b128 v23, v[{32+4*i}:{35+4*i}] offset:{1024*i}")
    for i in range(16): a.I(f"v_fmac_f32 v{GP+i}, v136, v{48+i}")
    a.I("s_branch L_S1")
    a.L("L_S0")
    a.I("s_nop 11")
    for i in range(4): a.I(f"ds_write_b128 v23, v[{48+4*i}:{51+4*i}] offset:{1024*i}")
    for i in range(16): a.I(f"v_fmac_f32 v{GP+i}, v136, v{32+i}")
    a.L("L_S1")
    a.I("s_waitcnt lgkmcnt(0)\ns_barrier")
    for i in range(4): a.I(f"ds_read_b128 v[{64+4*i}:{67+4*i}], v24 offset:{1024*i}")
    a.I("v_lshl_add_u32 v14, v13, 3, v14")
    for i in range(4):
        a.I(f"s_waitcnt lgkmcnt({3-i})")
        for k in range(4): a.I(f"v_fmac_f32 v{GP+4*i+k}, v136, v{64+4*i+k}")
    for i in range(8): a.I(f"v_cvt_pk_bf16_f32 v{48+i}, v{GP+2*i}, v{GP+2*i+1}")
    for pr in range(2):
        a.I(f"v_permlane32_swap_b32 v{48+4*pr}, v{48+4*pr+2}\nv_permlane32_swap_b32 v{48+4*pr+1}, v{48+4*pr+3}")
    for pr in range(2):
        a.I(f"buffer_store_dwordx4 v[{48+4*pr}:{51+4*pr}], v14, s[{SOUT}:{SOUT+3}], s47 offen offset:{32*pr}")
    tstamp(a, 3); stamp_rt(a, 9); stamp_flush(a)
    a.I("s_endpgm")

    a.L("L_ATT")
    SK, SV, SSH, SX, SWQ = 52, 56, 60, 64, 68
    a.I("""
    s_sub_u32 s6, s5, 4            ; aw
    s_lshl_b32 s7, s3, 16
    s_lshl_b32 s8, s4, 7           ; hg*128
    v_and_b32 v40, 2, v3
    v_xor_b32 v40, v40, v4
    v_lshlrev_b32 v40, 4, v40
    v_lshl_or_b32 v40, v3, 10, v40
    v_xor_b32 v41, 64, v40
    s_and_b32 s10, s4, 3
    s_lshl_b32 s10, s10, 1         ; 2i
    s_lshl_b32 s11, s6, 7
    s_add_u32 s11, s11, s7         ; 64r*1024 + aw*128
    s_lshl_b32 s12, s6, 10         ; aw*1024
    s_waitcnt lgkmcnt(0)""")
    srd(a, SX, P_X, 0x200000); srd(a, SWQ, P_WQ, 0x80000)
    for e in range(6):
        a.I(f"""
        s_cmp_le_u32 s10, {e}
        s_cselect_b32 s13, {e+2}, {e}
        s_lshl_b32 s13, s13, 13
        s_add_u32 m0, s12, s13
        s_add_u32 s13, s13, s11
        buffer_load_dwordx4 v5, s[{SX}:{SX+3}], s13 offen lds""")
    a.I(f"""
    s_lshl_b32 s14, s6, 16
    s_add_u32 s14, s14, s8
    s_lshl_b32 s12, s6, 13
    s_add_u32 m0, s12, {WQ_L}""")
    for e in range(8):
        a.I(f"buffer_load_dwordx4 v{40 + (e & 1)}, s[{SWQ}:{SWQ+3}], s14 offen lds")
        if e < 7: a.I("s_add_u32 m0, m0, 1024\ns_add_u32 s14, s14, 8192")
    srd(a, SWS, P_WS, WS_SIZE)
    srd(a, SK, P_K, 0x200000); srd(a, SV, P_V, 0x200000); srd(a, SSH, P_SH, 4096)
    xfrag_bases(a, 20, 21, 10, 11, 12)
    a.I(f"""
    s_lshr_b32 s10, s6, 2                ; nt
    s_and_b32 s11, s6, 3                 ; hd
    s_lshl_b32 s12, s10, 15
    v_add_u32 v20, s12, v20
    v_add_u32 v21, s12, v21
    v_lshrrev_b32 v11, 4, v2             ; g
    v_bfe_u32 v13, v2, 2, 2              ; rr
    v_bfe_u32 v14, v2, 1, 1              ; cc>>1
    s_lshl_b32 s12, s11, 1
    v_or_b32 v14, s12, v14
    v_and_b32 v15, 2, v13
    v_and_b32 v16, 1, v11
    v_lshl_or_b32 v15, v16, 2, v15
    v_xor_b32 v14, v14, v15
    v_lshlrev_b32 v17, 4, v14
    v_lshl_or_b32 v17, v13, 7, v17
    v_lshl_or_b32 v17, v11, 10, v17
    v_and_b32 v14, 1, v2
    v_lshl_or_b32 v17, v14, 3, v17
    v_add_u32 v17, {WQ_L}, v17
    v_and_b32 v6, 31, v2
    v_lshrrev_b32 v7, 5, v2
    v_lshlrev_b32 v9, 12, v7
    v_lshl_add_u32 v9, v6, 2, v9
    s_lshl_b32 s9, s6, 13
    s_add_u32 s9, s9, s7
    s_add_u32 s9, s9, s8
    v_add_u32 v9, s9, v9                 ; vo_base
    v_subrev_u32 v18, 3072, v9           ; vo_halo
    v_lshlrev_b32 v22, 4, v6
    s_lshl_b32 s9, s4, 9
    v_lshl_or_b32 v19, v6, 1, v7
    v_lshlrev_b32 v19, 12, v19           ; (2lam+half)*4096
    s_lshl_b32 s12, s4, 18
    s_lshl_b32 s13, s3, 7
    s_sub_u32 s12, s12, s13
    s_lshl_b32 s13, s6, 4
    s_sub_u32 s12, s12, s13
    s_add_u32 s12, s12, {WS_U + 2040*2}""")
    for i in range(8): a.I(f"v_mov_b32 v{24+i}, 0")
    stamp(a, 2)
    a.I("s_waitcnt vmcnt(0)\ns_barrier")
    stamp(a, 3)
    KR, VR, SHR = 116, 123, 128
    for i in range(3): a.I(f"buffer_load_dword v{KR+i}, v18, s[{SK}:{SK+3}], 0 offen offset:{1024*i}")
    for i in range(4): a.I(f"buffer_load_dword v{KR+3+i}, v9, s[{SK}:{SK+3}], 0 offen offset:{1024*i}")
    for i in range(4): a.I(f"buffer_load_dword v{VR+i}, v9, s[{SV}:{SV+3}], 0 offen offset:{1024*i}")
    a.I(f"buffer_load_dwordx4 v[{SHR}:{SHR+3}], v22, s[{SSH}:{SSH+3}], s9 offen")
    def q_reads(s):
        b = 32 + 12 * (s % 4)
        a.I(f"ds_read_b64_tr_b16 v[{b}:{b+1}], v17 offset:{4096*s}")
        a.I(f"ds_read_b64_tr_b16 v[{b+2}:{b+3}], v17 offset:{4096*s+512}")
        a.I(f"ds_read_b128 v[{b+4}:{b+7}], v{20+(s&1)} offset:{1024*(s>>1)}")
        a.I(f"ds_read_b128 v[{b+8}:{b+11}], v{20+(s&1)} offset:{1024*(s>>1)+16384}")
    for s in range(3): q_reads(s)
    for s in range(16):
        if s + 3 < 16: q_reads(s + 3)
        a.I(f"s_waitcnt lgkmcnt({4*min(3, 15-s)})")
        b = 32 + 12 * (s % 4)
        a.I(f"v_mfma_f32_16x16x32_bf16 v[24:27], v[{b}:{b+3}], v[{b+4}:{b+7}], v[24:27]")
        a.I(f"v_mfma_f32_16x16x32_bf16 v[28:31], v[{b}:{b+3}], v[{b+8}:{b+11}], v[28:31]")
    stamp(a, 1)
    a.I("s_mov_b32 s15, 0xffff0000\ns_waitcnt vmcnt(0)")
    for i in range(4):
        a.I(f"v_lshlrev_b32 v{44+2*i}, 16, v{SHR+i}\nv_and_b32 v{45+2*i}, s15, v{SHR+i}")
    for i in range(7):
        a.I(f"v_lshlrev_b32 v{52+i}, 16, v{KR+i}\nv_and_b32 v{60+i}, s15, v{KR+i}")
    for i in range(4):
        a.I(f"v_lshlrev_b32 v{68+i}, 16, v{VR+i}\nv_and_b32 v{72+i}, s15, v{VR+i}")
    for c in range(2):
        kb, wb, vb, ob = 52 + 8 * c, 44 + 4 * c, 68 + 4 * c, 76 + 4 * c
        for i in range(4): a.I(f"v_mul_f32 v{ob+i}, v{kb+i}, v{wb+3}")
        for jj in (2, 1, 0):
            for i in range(4): a.I(f"v_fmac_f32 v{ob+i}, v{kb+i+3-jj}, v{wb+jj}")
        for i in range(4): a.I(f"v_mul_f32 v{ob+i}, v{ob+i}, v{vb+i}")
    a.I(f"""
    v_cvt_pk_bf16_f32 v86, v79, v78
    v_cvt_pk_bf16_f32 v87, v77, v76
    v_cvt_pk_bf16_f32 v84, v83, v82
    v_cvt_pk_bf16_f32 v85, v81, v80
    v_permlane32_swap_b32 v86, v84
    v_permlane32_swap_b32 v87, v85
    buffer_store_dwordx4 v[84:87], v19, s[{SWS}:{SWS+3}], s12 offen sc1""")
    Q, CM, O, SA, SB, PA, PB, KF, VF = 4, 16, 32, 48, 64, 80, 84, 88, 96
    AKC, AVC, AKN, AVN = 112, 113, 114, 115
    a.I(f"""
    v_and_b32 v14, 27, v2
    v_cmp_eq_u32 vcc, 16, v14
    v_mov_b32 v15, 0x3f803f80
    v_cndmask_b32 v14, 0, v15, vcc""")
    for i in range(16): a.I(f"v_mov_b32 v{VF+i}, v14")
    a.I(f"""
    v_cvt_pk_bf16_f32 v{Q}, v24, v25
    v_cvt_pk_bf16_f32 v{Q+1}, v26, v27
    v_cvt_pk_bf16_f32 v{Q+2}, v28, v29
    v_cvt_pk_bf16_f32 v{Q+3}, v30, v31
    v_permlane16_swap_b32 v{Q}, v{Q+2}
    v_permlane16_swap_b32 v{Q+1}, v{Q+3}
    v_mov_b32 v10, 0""")
    for i in range(4): a.I(f"v_dot2_f32_bf16 v10, v{Q+i}, v{Q+i}, v10")
    a.I(f"""
    s_lshl_b32 s7, s3, 1
    s_add_u32 s7, s7, s10
    s_lshl_b32 s7, s7, 5
    s_lshl_b32 s12, s4, 2
    s_add_u32 s7, s7, s12
    s_add_u32 s7, s7, s11
    s_lshl_b32 s7, s7, 10
    s_add_u32 s7, s7, {WS_O}
    v_mov_b32 v11, v10
    v_permlane32_swap_b32 v10, v11
    v_add_f32 v10, v10, v11              ; |q|^2
    v_and_b32 v3, 15, v2
    v_lshlrev_b32 v3, 4, v3
    v_lshrrev_b32 v14, 5, v2
    v_lshl_or_b32 v3, v14, 8, v3
    v_add_u32 v3, 1024, v3
    s_mov_b32 s12, 0x0000ffff
    s_mov_b32 s13, 0x0000ffff
    v_mov_b32 v12, {SM_TAG}
    s_lshl_b32 s9, s6, 11
    s_lshl_b32 s10, s2, 11
    s_and_b32 s10, s10, 0x1c000          ; c0*16384
    s_add_u32 s11, s9, {WS_KV}
    s_mov_b32 s14, 0""")
    stamp(a, 4)
    a.I("s_barrier")
    stamp(a, 5)
    a.I(f"ds_read_b64 v[12:13], v12\ns_mov_b32 m0, s9")
    for c in range(7):
        a.I(f"""
        s_add_u32 s10, s10, 16384
        s_and_b32 s10, s10, 0x1c000
        s_add_u32 s15, s10, s11
        buffer_load_dwordx4 v8, s[{SWS}:{SWS+3}], s15 offen sc1 lds
        buffer_load_dwordx4 v8, s[{SWS}:{SWS+3}], s15 offen offset:1024 sc1 lds""")
        if c < 6: a.I("s_add_u32 m0, m0, 16384")
    a.I(f"""
    s_waitcnt lgkmcnt(0)
    v_readfirstlane_b32 s{S_TAG}, v12
    v_mul_f32 v10, v10, v13
    v_sqrt_f32 v10, v10
    s_nop 0
    v_mul_f32 v10, {hex(f2u(-(1.0 + 2.0**-6)))}, v10""")
    for i in range(16): a.I(f"v_mov_b32 v{CM+i}, v10")
    def rdK(buf, t):
        r = AKC if t < 8 else AKN
        a.I(f"ds_read_b128 v[{KF+4*buf}:{KF+4*buf+3}], v{r} offset:{2048*(t&7)}")
    def rdV(buf, t):
        r = AVC if t < 8 else AVN
        a.I("s_mov_b64 exec, s[12:13]")
        a.I(f"ds_read_b128 v[{VF+8*buf}:{VF+8*buf+3}], v{r} offset:{2048*(t&7)}")
        a.I(f"ds_read_b128 v[{VF+8*buf+4}:{VF+8*buf+7}], v{r} offset:{2048*(t&7)+512}")
        a.I("s_mov_b64 exec, -1")
    def qk(S, buf): a.I(f"v_mfma_f32_32x32x16_bf16 v[{S}:{S+15}], v[{KF+4*buf}:{KF+4*buf+3}], v[{Q}:{Q+3}], v[{CM}:{CM+15}]")
    def pv(vreg, p): a.I(f"v_mfma_f32_32x32x16_bf16 v[{O}:{O+15}], v[{vreg}:{vreg+3}], v[{p}:{p+3}], v[{O}:{O+15}]")
    def ex(S, lo, hi):
        for i in range(lo, hi): a.I(f"v_exp_f32 v{S+i}, v{S+i}")
    def cv(p, S):
        for i in range(4): a.I(f"v_cvt_pk_bf16_f32 v{p+i}, v{S+2*i}, v{S+2*i+1}")
    a.L("L_RESTART")
    a.I(f"""
    v_add_u32 v{AKC}, {KV0_L}, v8
    v_add_u32 v{AVC}, {KV0_L}, v3
    v_mov_b32 v{AKN}, v8
    v_mov_b32 v{AVN}, v3""")
    rdK(0, 0); rdK(1, 1); rdV(0, 0)
    for i in range(16): a.I(f"v_mov_b32 v{O+i}, 0")
    for i in range(4): a.I(f"v_mov_b32 v{PB+i}, 0")
    a.I("s_waitcnt lgkmcnt(2)")
    qk(SA, 0)
    a.I("s_mov_b32 s15, 0")
    a.L("L_LOOP")
    for t in range(8):
        par = t & 1
        cur, nxt = (SA, SB) if par == 0 else (SB, SA)
        if par == 0: a.I(f"s_setprio {ATT_PRIOS[t >> 1]}")
        if t == 6:
            a.I("""
            s_or_b32 s11, s14, s15
            s_cmp_lg_u32 s11, 0
            s_cbranch_scc1 L_NOBAR
            s_waitcnt vmcnt(0)
            s_barrier
            L_NOBAR:""")
        a.I("s_waitcnt lgkmcnt(0)")
        qk(nxt, par ^ 1)
        rdK(par, t + 2)
        ex(cur, 0, 6)
        pv(VF + 8 * (par ^ 1) + 4, PB)
        rdV(par ^ 1, t + 1)
        ex(cur, 6, 8)
        cv(PA, cur)
        ex(cur, 8, 12)
        pv(VF + 8 * par, PA)
        ex(cur, 12, 16)
        cv(PB, cur + 8)
    if STAMP:
        a.I("s_memtime s[76:77]\ns_waitcnt lgkmcnt(0)\ns_mov_b32 m0, s15\nv_writelane_b32 v120, s76, m0")
    a.I(f"""
    v_mov_b32 v{AKC}, v{AKN}
    v_mov_b32 v{AVC}, v{AVN}
    v_add_u32 v{AKN}, 16384, v{AKN}
    v_add_u32 v{AVN}, 16384, v{AVN}
    s_add_u32 s15, s15, 1
    s_cmp_lt_u32 s15, 8
    s_cbranch_scc1 L_LOOP""")
    pv(VF + 8 + 4, PB)
    a.I(f"""
    s_setprio 0
    s_cmp_lg_u32 s14, 0
    s_cbranch_scc1 L_FIN
    s_nop 7
    v_mov_b32 v9, {hex(f2u(2.0**-24))}
    v_mov_b32 v10, {hex(f2u(2.0**100))}
    v_cmp_ge_f32 vcc, v{O+8}, v9
    v_cmp_le_f32 s[10:11], v{O+8}, v10
    s_and_b64 vcc, vcc, s[10:11]
    s_cmp_eq_u64 vcc, -1
    s_cbranch_scc1 L_FIN
    s_mov_b32 s14, 1
    v_add_u32 v1, {KV0_L}, v8
    v_mov_b32 v10, 0xff800000
    s_mov_b32 s15, 0
    s_waitcnt lgkmcnt(0)
    L_MAXLOOP:
    ds_read_b128 v[{KF}:{KF+3}], v1
    s_waitcnt lgkmcnt(0)
    v_mfma_f32_32x32x16_bf16 v[{SA}:{SA+15}], v[{KF}:{KF+3}], v[{Q}:{Q+3}], 0""")
    for i in range(8): a.I(f"v_max3_f32 v10, v10, v{SA+2*i}, v{SA+2*i+1}")
    a.I(f"""
    v_add_u32 v1, 2048, v1
    s_add_u32 s15, s15, 1
    s_cmp_lg_u32 s15, 8
    s_cbranch_scc1 L_MAX2
    v_mov_b32 v1, v8
    L_MAX2:
    s_cmp_lt_u32 s15, 64
    s_cbranch_scc1 L_MAXLOOP
    v_mov_b32 v9, v10
    v_permlane32_swap_b32 v10, v9
    v_max_f32 v10, v10, v9
    v_sub_f32 v10, 0, v10""")
    for i in range(16): a.I(f"v_mov_b32 v{CM+i}, v10")
    a.I("s_branch L_RESTART")
    a.L("L_FIN")
    stamp(a, 6)
    a.I(f"s_nop 11\nv_rcp_f32 v9, v{O+8}")
    for i in range(8): a.I(f"v_mul_f32 v{O+i}, v{O+i}, v9")
    for i in range(4): a.I(f"v_cvt_pk_bf16_f32 v{PA+i}, v{O+2*i}, v{O+2*i+1}")
    SWO = 52
    a.I(f"buffer_store_dwordx4 v[{PA}:{PA+3}], v8, s[{SWS}:{SWS+3}], s7 offen sc1")
    srd(a, SWO, P_WO, 0x80000)
    a.I(f"""
    v_lshrrev_b32 v3, 3, v2
    v_and_b32 v4, 7, v2
    v_and_b32 v9, 2, v3
    v_lshlrev_b32 v9, 1, v9
    v_xor_b32 v9, v9, v4
    v_lshlrev_b32 v9, 4, v9
    v_lshl_or_b32 v9, v3, 10, v9
    s_lshl_b32 s10, s6, 16
    s_add_u32 s10, s10, s8
    s_lshl_b32 s11, s6, 13
    s_mov_b32 m0, s11
    v_mov_b32 v10, {SM_CNT + 8}
    v_mov_b32 v11, 1
    s_lshl_b32 s12, s3, 10
    s_lshl_b32 s13, s4, 7
    s_add_u32 s12, s12, s13
    s_add_u32 s12, s12, {WS_FL3}
    s_waitcnt vmcnt(0) lgkmcnt(0)
    s_mov_b64 exec, 1
    ds_add_rtn_u32 v12, v10, v11
    s_waitcnt lgkmcnt(0)
    v_readfirstlane_b32 s14, v12
    s_mov_b64 exec, -1
    s_cmp_lg_u32 s14, 7
    s_cbranch_scc1 L_E_WAIT""")
    store_flag(a, "s12", 12, 13)
    a.I(f"""
    s_branch L_E_GO
    L_E_WAIT:
    s_mov_b32 s15, 0
    L_E_W:
    s_sleep 2
    ds_read_b32 v12, v10
    s_waitcnt lgkmcnt(0)
    v_readfirstlane_b32 s14, v12
    s_add_u32 s15, s15, 1
    s_cmp_ge_u32 s15, {SPIN_MAX}
    s_cbranch_scc1 L_E_GO
    s_cmp_lt_u32 s14, 8
    s_cbranch_scc1 L_E_W
    L_E_GO:""")
    stamp(a, 7)
    for e in range(8):
        a.I(f"buffer_load_dwordx4 v9, s[{SWO}:{SWO+3}], s10 offen lds")
        if e < 7: a.I("s_add_u32 m0, m0, 1024\ns_add_u32 s10, s10, 8192")
    a.I("""
    s_waitcnt vmcnt(0)
    s_mov_b64 exec, 1
    ds_add_u32 v10, v11 offset:4
    s_mov_b64 exec, -1""")
    if STAMP:
        a.I(f"s_lshl_b32 s100, s2, 4\ns_add_u32 s100, s100, s5\ns_lshl_b32 s100, s100, 6\ns_add_u32 s100, s100, {WS_ST + 0x40000}")
        a.I(f"v_lshlrev_b32 v1, 2, v2\ns_mov_b64 exec, 0xff\nbuffer_store_dword v120, v1, s[{SWS}:{SWS+3}], s100 offen\ns_mov_b64 exec, -1")
    stamp_rt(a, 9); stamp_flush(a)
    a.I("L_END:\ns_endpgm")
    a.finalize()
    return a

def main(out):
    ref = open(f"cdna_kernels/{NAME}.s.ref").read()
    hdr = [l for l in ref.split("\n") if l.startswith(";") and "@launch" not in l]
    a = gen()
    s = "\n".join(hdr) + "\n"
    s += f"; @launch grid=(256,1,1) block=(768,1,1) lds={LDS_BYTES}\n"
    s += f'.amdgcn_target "amdgcn-amd-amdhsa--gfx950"\n.text\n.globl {KNAME}\n.p2align 8\n.type {KNAME},@function\n{KNAME}:\n'
    s += a.text()
    s += f""".section .rodata,"a"
.p2align 6
.amdhsa_kernel {KNAME}
  .amdhsa_next_free_vgpr 168
  .amdhsa_next_free_sgpr 102
  .amdhsa_accum_offset 168
  .amdhsa_group_segment_fixed_size 0
  .amdhsa_kernarg_size 120
  .amdhsa_user_sgpr_count 2
  .amdhsa_user_sgpr_kernarg_segment_ptr 1
  .amdhsa_system_sgpr_workgroup_id_x 1
.end_amdhsa_kernel
"""
    open(out, "w").write(s)

if __name__ == "__main__":
    if "--stamp" in sys.argv:
        STAMP = True; sys.argv.remove("--stamp")
    for nm in ("CONV_PF", "CONV_PRIO"):
        for x in list(sys.argv):
            if x.startswith(f"--{nm}="):
                globals()[nm] = int(x.split("=")[1]); sys.argv.remove(x)
    for x in list(sys.argv):
        if x.startswith("--ATT_PRIOS="):
            ATT_PRIOS = [int(c) for c in x.split("=")[1]]; sys.argv.remove(x)
    if "--tail" in sys.argv:
        TAIL = True; sys.argv.remove("--tail")
    main(sys.argv[1] if len(sys.argv) > 1 else f"cdna_kernels/{NAME}.s")
```

```python
import sys, struct
from asmlib import Asm

NAME = "gated_mix__ssm_conv_h3__grouped_kv_mqa__prompt"
KNAME = NAME + "_kernel"
WS_O, WS_U, WS_Y, WS_KV = 0x200000, 0x400000, 0x600000, 0x800000
WS_FL1, WS_FL1B, WS_FL2, WS_FL3 = 0x840000, 0x844000, 0x848000, 0x850000
WS_SIZE = 0xA00000
WS_ST = 0x900000
def f2u(x): return struct.unpack("<I", struct.pack("<f", x))[0]
LOG2E = 1.4426950408889634
CSCALE = 0.25 * LOG2E
STAMP = False
SPIN_MAX = 1 << 18

X_L, WQ_L, TB, GW_L, WKV_L = 0, 65536, 131072, 140288, 147456
SM = 146688
SM_G, SM_TAG, SM_KN, SM_CNT = SM, SM + 256, SM + 260, SM + 264
U_L, U_ST = 114688, 7680
H_L, H_ST = U_L + 2 * U_ST, 4160
KV0_L = 147456
WO_L, RED_L = 0, 65536
LDS_BYTES = 163840
assert H_L + 4 * H_ST == SM

P_X, P_K, P_V, P_SH, P_H, P_D, P_WQ, P_WK, P_WV, P_WO, P_GW, P_OUT, P_DBG, P_WS = 16, 18, 20, 22, 24, 26, 30, 32, 34, 36, 38, 40, 42, 44
SWS = 48
S_TAG = 46

def srd(a, d, lo, n):
    a.I(f"""
    s_mov_b32 s{d}, s{lo}
    s_and_b32 s{d+1}, s{lo+1}, 0xffff
    s_mov_b32 s{d+2}, {n}
    s_mov_b32 s{d+3}, 0x20000""")

def stamp(a, idx):
    if STAMP: a.I(f"s_memtime s[{80+2*idx}:{81+2*idx}]")
TAIL = False
def tstamp(a, idx):
    if TAIL: stamp(a, idx)
def stamp_rt(a, idx):
    if STAMP: a.I(f"s_memrealtime s[{80+2*idx}:{81+2*idx}]")
def stamp_flush(a):
    if STAMP:
        a.I("s_waitcnt lgkmcnt(0)\ns_mov_b64 exec, 1")
        a.I(f"s_lshl_b32 s100, s2, 4\ns_add_u32 s100, s100, s5\ns_lshl_b32 s100, s100, 6\ns_add_u32 s100, s100, {WS_ST}")
        a.I("v_mov_b32 v1, 0")
        for i in range(10):
            a.I(f"v_mov_b32 v2, s{80+2*i}\nbuffer_store_dword v2, v1, s[{SWS}:{SWS+3}], s100 offen offset:{4*i}")

def row_reduce(a, op, v):
    for r in (8, 4, 2, 1):
        a.I(f"{op}_dpp v{v}, v{v}, v{v} row_ror:{r} row_mask:0xf bank_mask:0xf")
def cross_rows(a, op, v, t):
    a.I(f"""
    v_mov_b32 v{t}, v{v}
    v_permlane16_swap_b32 v{v}, v{t}
    {op} v{v}, v{v}, v{t}
    v_mov_b32 v{t}, v{v}
    v_permlane32_swap_b32 v{v}, v{t}
    {op} v{v}, v{v}, v{t}""")

_lbl = [0]
def poll(a, loads, checks, sleep=1, cnt="s15"):
    _lbl[0] += 1
    L = f"POLL{_lbl[0]}"
    a.I(f"s_mov_b32 {cnt}, 0")
    a.L(L)
    a.I(loads)
    a.I("s_waitcnt vmcnt(0)")
    a.I(f"v_cmp_ne_u32 vcc, s{S_TAG}, v{checks[0]}")
    for c in checks[1:]:
        a.I(f"v_cmp_ne_u32 s[12:13], s{S_TAG}, v{c}\ns_or_b64 vcc, vcc, s[12:13]")
    a.I(f"""
    s_cmp_eq_u64 vcc, 0
    s_cbranch_scc1 {L}_D
    s_sleep {sleep}
    s_add_u32 {cnt}, {cnt}, 1
    s_cmp_lt_u32 {cnt}, {SPIN_MAX}
    s_cbranch_scc1 {L}
    {L}_D:""")

def store_flag(a, soff_reg, vt0, vt1, aux=None):
    if aux is None:
        a.I(f"""
        v_mov_b32 v{vt0}, s{S_TAG}
        v_mov_b32 v{vt1}, 0
        s_mov_b64 exec, 1
        buffer_store_dword v{vt0}, v{vt1}, s[{SWS}:{SWS+3}], {soff_reg} offen sc1
        s_mov_b64 exec, -1""")

def lds_sync(a, idx, n, vt0, vt1):
    _lbl[0] += 1
    L = f"LS{_lbl[0]}"
    a.I(f"""
    s_waitcnt vmcnt(0) lgkmcnt(0)
    v_mov_b32 v{vt0}, {SM_CNT + 4*idx}
    v_mov_b32 v{vt1}, 1
    s_mov_b64 exec, 1
    ds_add_u32 v{vt0}, v{vt1}
    s_mov_b64 exec, -1
    s_mov_b32 s15, 0
    {L}:
    ds_read_b32 v{vt1}, v{vt0}
    s_waitcnt lgkmcnt(0)
    v_readfirstlane_b32 s14, v{vt1}
    s_cmp_ge_u32 s14, {n}
    s_cbranch_scc1 {L}_D
    s_sleep 1
    s_add_u32 s15, s15, 1
    s_cmp_lt_u32 s15, {SPIN_MAX}
    s_cbranch_scc1 {L}
    {L}_D:""")

def xfrag_bases(a, ve, vo, t0, t1, t2):
    a.I(f"""
    v_and_b32 v{t0}, 7, v2               ; j
    v_lshrrev_b32 v{t1}, 4, v2           ; g
    v_xor_b32 v{t1}, v{t1}, v{t0}
    v_lshlrev_b32 v{ve}, 4, v{t1}
    v_lshl_or_b32 v{ve}, v{t0}, 7, v{ve}
    v_bfe_u32 v{t2}, v2, 3, 1
    v_lshl_or_b32 v{ve}, v{t2}, 13, v{ve}
    v_xor_b32 v{vo}, 64, v{ve}""")

def gen():
    a = Asm()
    a.I("s_cmp_ge_u32 s2, 256\ns_cbranch_scc1 L_END")
    stamp(a, 0); stamp_rt(a, 8)
    a.I("""
    s_load_dwordx16 s[16:31], s[0:1], 0
    s_load_dwordx8 s[32:39], s[0:1], 64
    s_load_dwordx4 s[40:43], s[0:1], 96
    s_load_dwordx2 s[44:45], s[0:1], 112
    v_lshrrev_b32 v1, 6, v0
    v_and_b32 v2, 63, v0           ; lane
    v_readfirstlane_b32 s5, v1     ; wave
    s_and_b32 s3, s2, 7
    s_lshl_b32 s3, s3, 2
    s_lshr_b32 s4, s2, 3
    s_and_b32 s4, s4, 3
    s_or_b32 s3, s3, s4            ; r
    s_lshr_b32 s4, s2, 5           ; hg
    v_lshlrev_b32 v8, 4, v2        ; lane*16
    v_lshrrev_b32 v3, 3, v2
    v_and_b32 v4, 7, v2
    v_xor_b32 v5, v3, v4
    v_lshlrev_b32 v5, 4, v5
    v_lshl_or_b32 v5, v3, 10, v5   ; x voffset
    s_cmp_ge_u32 s5, 4
    s_cbranch_scc1 L_ATT
    s_cmp_lg_u32 s5, 0
    s_cbranch_scc1 L_H123""")
    SX, SWKV, SDBG = 52, 56, 60
    a.I(f"""
    s_and_b32 s10, s4, 3                 ; i
    s_lshl_b32 s11, s3, 16
    s_lshl_b32 s12, s10, 14
    s_add_u32 s11, s11, s12              ; (64r+16i)*1024
    s_mov_b32 m0, s12
    v_lshrrev_b32 v37, 1, v2             ; pos
    v_and_b32 v38, 0x13, v37
    v_and_b32 v39, 4, v37
    v_lshl_or_b32 v38, v39, 1, v38
    v_and_b32 v39, 8, v37
    v_lshrrev_b32 v39, 1, v39
    v_or_b32 v38, v38, v39               ; swap23(pos)
    v_lshlrev_b32 v38, 5, v38
    v_and_b32 v39, 1, v2
    v_lshl_or_b32 v38, v39, 4, v38
    s_waitcnt lgkmcnt(0)""")
    srd(a, SDBG, P_DBG, 256)
    a.I(f"""
    v_mov_b32 v9, 0
    s_cmp_lg_u32 s2, 0
    s_cbranch_scc1 L_H0_NOTAG
    s_memrealtime s[14:15]
    s_waitcnt lgkmcnt(0)
    s_or_b32 s14, s14, 1
    v_mov_b32 v10, s14
    s_mov_b64 exec, 1
    buffer_store_dword v10, v9, s[{SDBG}:{SDBG+3}], 0 offen sc1
    s_mov_b64 exec, -1
    L_H0_NOTAG:""")
    srd(a, SX, P_X, 0x200000)
    for e in range(16):
        a.I(f"buffer_load_dwordx4 v5, s[{SX}:{SX+3}], s11 offen offset:{128*(e&7)} lds")
        if e == 7: a.I("s_add_u32 s11, s11, 8192\ns_add_u32 m0, m0, %d" % (8192 - 7 * 896))
        elif e < 15: a.I("s_add_u32 m0, m0, 896")
    a.I(f"""
    s_cmp_lt_u32 s4, 4
    s_cselect_b32 s{SWKV}, s{P_WK}, s{P_WV}
    s_cselect_b32 s{SWKV+1}, s{P_WK+1}, s{P_WV+1}
    s_and_b32 s{SWKV+1}, s{SWKV+1}, 0xffff
    s_mov_b32 s{SWKV+2}, 16384
    s_mov_b32 s{SWKV+3}, 0x20000
    s_mov_b32 m0, {WKV_L}
    s_mov_b32 s13, 0""")
    for e in range(16):
        a.I(f"buffer_load_dwordx4 v38, s[{SWKV}:{SWKV+3}], s13 offen offset:{1024*(e&3)} lds")
        if e & 3 == 3 and e < 15: a.I("s_add_u32 m0, m0, 4096\ns_add_u32 s13, s13, 4096")
    srd(a, SWS, P_WS, WS_SIZE)
    xfrag_bases(a, 20, 21, 10, 11, 12)
    a.I(f"""
    v_add_u32 v20, s12, v20
    v_add_u32 v21, s12, v21
    v_and_b32 v10, 15, v2                ; n
    v_lshrrev_b32 v11, 4, v2             ; g
    v_lshrrev_b32 v13, 2, v10            ; rr
    v_and_b32 v14, 3, v10                ; cc
    v_lshlrev_b32 v15, 3, v14
    v_lshl_or_b32 v15, v13, 5, v15
    v_and_b32 v16, 1, v11
    v_lshrrev_b32 v19, 1, v11
    v_lshlrev_b32 v19, 9, v19
    v_lshl_or_b32 v19, v16, 7, v19
    v_or_b32 v19, v19, v15
    s_mov_b32 s13, {WKV_L}
    v_add_u32 v19, s13, v19
    v_mov_b32 v22, {SM_CNT}
    v_mov_b32 v24, 0
    v_mov_b32 v25, 0
    v_mov_b32 v26, 0
    v_mov_b32 v27, 0
    ds_write_b64 v22, v[24:25]
    ds_write_b64 v22, v[24:25] offset:8
    s_mov_b32 s15, 0
    L_H0_TAG:
    buffer_load_dword v23, v9, s[{SDBG}:{SDBG+3}], 0 offen sc1
    s_waitcnt vmcnt(0)
    v_readfirstlane_b32 s{S_TAG}, v23
    s_add_u32 s15, s15, 1
    s_cmp_ge_u32 s15, {SPIN_MAX}
    s_cbranch_scc1 L_H0_GOT
    s_cmp_eq_u32 s{S_TAG}, 0
    s_cbranch_scc1 L_H0_TAG
    L_H0_GOT:""")
    stamp(a, 1)
    a.I(f"v_mov_b32 v22, {SM_TAG}\nds_write_b32 v22, v23")
    def kv_reads(s):
        b = 32 + 8 * (s % 4)
        a.I(f"ds_read_b128 v[{b}:{b+3}], v{20 + (s & 1)} offset:{1024*(s>>1)}")
        a.I(f"ds_read_b64_tr_b16 v[{b+4}:{b+5}], v19 offset:{1024*s}")
        a.I(f"ds_read_b64_tr_b16 v[{b+6}:{b+7}], v19 offset:{1024*s+256}")
    a.I(f"""
    s_lshr_b32 s11, s10, 1
    s_lshl_b32 s12, s3, 1
    s_add_u32 s11, s11, s12
    s_lshl_b32 s11, s11, 11              ; T*2048
    s_and_b32 s12, s10, 1                ; kk
    s_lshl_b32 s13, s2, 5
    s_add_u32 s13, s13, {WS_FL1}
    s_waitcnt lgkmcnt(0)
    s_cmp_ge_u32 s4, 4
    s_cbranch_scc1 L_H0_V""")
    for isv in (0, 1):
        if isv: a.L("L_H0_V")
        for s in range(3): kv_reads(s)
        for s in range(16):
            if s + 3 < 16: kv_reads(s + 3)
            a.I(f"s_waitcnt lgkmcnt({3*min(3, 15-s)})")
            b = 32 + 8 * (s % 4)
            if isv: a.I(f"v_mfma_f32_16x16x32_bf16 v[24:27], v[{b}:{b+3}], v[{b+4}:{b+7}], v[24:27]")
            else:   a.I(f"v_mfma_f32_16x16x32_bf16 v[24:27], v[{b+4}:{b+7}], v[{b}:{b+3}], v[24:27]")
        if not isv:
            a.I(f"""
            v_lshrrev_b32 v30, 1, v11
            v_lshlrev_b32 v30, 9, v30
            v_lshl_or_b32 v30, v10, 4, v30
            v_lshl_or_b32 v30, v16, 3, v30
            s_lshl_b32 s12, s12, 8
            s_add_u32 s11, s11, s12
            s_add_u32 s11, s11, {WS_KV}
            s_mov_b32 s14, {hex(f2u(CSCALE))}""")
            for i in range(4): a.I(f"v_mul_f32 v{24+i}, s14, v{24+i}")
            a.I(f"""
            v_cvt_pk_bf16_f32 v28, v24, v25
            v_cvt_pk_bf16_f32 v29, v26, v27
            buffer_store_dwordx2 v[28:29], v30, s[{SWS}:{SWS+3}], s11 offen sc1
            v_mov_b32 v32, 0
            v_dot2_f32_bf16 v32, v28, v28, v32
            v_dot2_f32_bf16 v32, v29, v29, v32
            s_nop 2""")
            cross_rows(a, "v_add_f32", 32, 33)
            row_reduce(a, "v_max_f32", 32)
            a.I("s_branch L_H0_FLAG")
        else:
            a.I(f"""
            v_lshrrev_b32 v30, 1, v11
            v_lshlrev_b32 v30, 3, v30
            v_lshl_or_b32 v30, v10, 4, v30
            v_lshl_or_b32 v30, v16, 8, v30
            s_lshl_b32 s12, s12, 9
            s_add_u32 s11, s11, s12
            s_add_u32 s11, s11, {WS_KV + 1024}
            v_cvt_pk_bf16_f32 v28, v24, v25
            v_cvt_pk_bf16_f32 v29, v26, v27
            buffer_store_dwordx2 v[28:29], v30, s[{SWS}:{SWS+3}], s11 offen sc1
            v_mov_b32 v32, 0""")
    a.L("L_H0_FLAG")
    stamp(a, 2)
    a.I(f"""
    v_mov_b32 v33, s{S_TAG}
    s_waitcnt vmcnt(0)
    s_mov_b64 exec, 1
    buffer_store_dwordx2 v[32:33], v9, s[{SWS}:{SWS+3}], s13 offen sc1
    s_mov_b64 exec, -1""")
    stamp(a, 3)
    a.I("s_waitcnt lgkmcnt(0)\ns_barrier")
    a.I("s_barrier")
    a.I(f"""
    s_lshl_b32 s13, s4, 5
    s_add_u32 s13, s13, s3
    s_lshl_b32 s13, s13, 5
    s_add_u32 s13, s13, {WS_FL1B}""")
    store_flag(a, "s13", 10, 11)
    a.I("s_branch L_HB")
    a.L("L_H123")
    SGW = 52
    a.I("s_waitcnt lgkmcnt(0)")
    srd(a, SWS, P_WS, WS_SIZE)
    a.I("s_cmp_lg_u32 s5, 1\ns_cbranch_scc1 L_H23")
    srd(a, SGW, P_GW, 1024)
    a.I(f"""
    s_mov_b32 m0, {GW_L}
    s_nop 0
    buffer_load_dwordx4 v8, s[{SGW}:{SGW+3}], 0 offen lds
    v_lshlrev_b32 v9, 5, v2              ; lane*32
    v_mov_b32 v10, {SM_TAG}
    s_mov_b32 s10, {WS_FL1}
    s_mov_b32 s11, {WS_FL1 + 4096}
    s_waitcnt vmcnt(0)
    s_barrier
    ds_read_b32 v11, v10
    s_waitcnt lgkmcnt(0)
    v_readfirstlane_b32 s{S_TAG}, v11""")
    stamp(a, 1)
    poll(a, f"""
    buffer_load_dwordx2 v[12:13], v9, s[{SWS}:{SWS+3}], s10 offen sc1
    buffer_load_dwordx2 v[14:15], v9, s[{SWS}:{SWS+3}], s10 offen offset:2048 sc1
    buffer_load_dwordx2 v[16:17], v9, s[{SWS}:{SWS+3}], s11 offen sc1
    buffer_load_dwordx2 v[18:19], v9, s[{SWS}:{SWS+3}], s11 offen offset:2048 sc1""", [13, 15, 17, 19], sleep=1)
    stamp(a, 2)
    a.I(f"s_mov_b32 m0, {KV0_L}\ns_mov_b32 s10, {WS_KV}")
    for e in range(16):
        a.I(f"buffer_load_dwordx4 v8, s[{SWS}:{SWS+3}], s10 offen offset:{1024*(e&3)} sc1 lds")
        if e & 3 == 3 and e < 15: a.I("s_add_u32 m0, m0, 4096\ns_add_u32 s10, s10, 4096")
    a.I("v_max3_f32 v12, v12, v14, v16\nv_max_f32 v12, v12, v18")
    row_reduce(a, "v_max_f32", 12); cross_rows(a, "v_max_f32", 12, 13)
    a.I(f"""
    v_mov_b32 v10, {SM_KN}
    ds_write_b32 v10, v12
    s_waitcnt vmcnt(0) lgkmcnt(0)""")
    stamp(a, 3)
    a.I("s_barrier\ns_branch L_HB")
    a.L("L_H23")
    xfrag_bases(a, 20, 21, 10, 11, 12)
    a.I(f"""
    s_sub_u32 s10, s5, 2
    s_lshl_b32 s11, s10, 15
    v_add_u32 v20, s11, v20
    v_add_u32 v21, s11, v21
    v_lshrrev_b32 v19, 4, v2
    v_lshlrev_b32 v19, 4, v19
    v_add_u32 v19, {GW_L}, v19
    v_mov_b32 v10, {SM_TAG}""")
    for i in range(8): a.I(f"v_mov_b32 v{24+i}, 0")
    a.I(f"""
    s_barrier
    ds_read_b32 v11, v10
    s_waitcnt lgkmcnt(0)
    v_readfirstlane_b32 s{S_TAG}, v11""")
    def g_reads(s):
        b = 32 + 12 * (s % 4)
        a.I(f"ds_read_b128 v[{b}:{b+3}], v19 offset:{64*s}")
        a.I(f"ds_read_b128 v[{b+4}:{b+7}], v{20+(s&1)} offset:{1024*(s>>1)}")
        a.I(f"ds_read_b128 v[{b+8}:{b+11}], v{20+(s&1)} offset:{1024*(s>>1)+16384}")
    for s in range(3): g_reads(s)
    for s in range(16):
        if s + 3 < 16: g_reads(s + 3)
        a.I(f"s_waitcnt lgkmcnt({3*min(3, 15-s)})")
        b = 32 + 12 * (s % 4)
        a.I(f"v_mfma_f32_16x16x32_bf16 v[24:27], v[{b}:{b+3}], v[{b+4}:{b+7}], v[24:27]")
        a.I(f"v_mfma_f32_16x16x32_bf16 v[28:31], v[{b}:{b+3}], v[{b+8}:{b+11}], v[28:31]")
    a.I(f"""
    v_cmp_gt_u32 vcc, 16, v2
    v_cndmask_b32 v24, v28, v24, vcc
    v_mul_f32 v24, {hex(f2u(-LOG2E))}, v24
    v_exp_f32 v24, v24
    v_add_f32 v24, 1.0, v24
    v_rcp_f32 v24, v24
    s_lshl_b32 s11, s10, 7
    s_add_u32 s11, s11, {SM_G}
    v_lshlrev_b32 v25, 2, v2
    v_add_u32 v25, s11, v25
    s_mov_b64 exec, 0xffffffff
    ds_write_b32 v25, v24
    s_mov_b64 exec, -1
    s_waitcnt lgkmcnt(0)
    s_barrier""")
    a.L("L_HB")
    a.I("s_setprio 3")
    stamp(a, 4)
    SH, SU, SD, SWO, SX2, SOUT = 52, 56, 60, 64, 68, 72
    srd(a, SH, P_H, 0x200000); srd(a, SD, P_D, 1024)
    a.I(f"""
    s_and_b32 s6, s5, 1
    s_lshl_b32 s8, s2, 1
    s_add_u32 s8, s8, s6
    s_lshl_b32 s9, s8, 12
    s_cmp_lt_u32 s5, 2
    s_cbranch_scc1 L_HB_U
    v_mov_b32 v9, 0
    buffer_load_dword v10, v9, s[{SH}:{SH+3}], s9 offen      ; h0,h1
    s_lshl_b32 s10, s8, 1
    buffer_load_ushort v11, v9, s[{SD}:{SD+3}], s10 offen    ; D
    s_mul_i32 s10, s6, {2*H_ST}
    s_add_u32 s10, s10, {H_L}
    s_add_u32 m0, s10, 64
    s_add_u32 s11, s9, 2""")
    for c in (1, 2):
        for q in range(4):
            a.I(f"buffer_load_dwordx4 v8, s[{SH}:{SH+3}], s11 offen offset:{1024*q} lds")
        if c == 1: a.I(f"s_add_u32 m0, m0, {H_ST}\ns_add_u32 s11, s11, 2")
    a.I(f"""
    s_barrier                             ; REST
    s_waitcnt vmcnt(8)
    v_lshlrev_b32 v12, 16, v10
    v_lshlrev_b32 v11, 16, v11
    v_add_f32 v12, v12, v11
    v_cvt_pk_bf16_f32 v12, v12, v12
    v_and_b32 v13, 0xffff0000, v12
    v_and_b32 v12, 0xffff, v12
    v_and_b32 v10, 0xffff0000, v10
    v_or_b32 v12, v12, v10
    v_mov_b32 v14, 0
    v_cmp_eq_u32 vcc, 15, v2
    v_cndmask_b32 v14, v14, v13, vcc
    v_cmp_eq_u32 vcc, 31, v2
    v_cndmask_b32 v14, v14, v12, vcc
    v_and_b32 v15, 15, v2
    v_lshlrev_b32 v15, 2, v15
    v_lshrrev_b32 v16, 4, v2
    v_mul_u32_u24 v16, {H_ST}, v16
    v_add3_u32 v15, v15, v16, s10
    s_mov_b64 exec, 0xffffffff
    ds_write_b32 v15, v14
    s_mov_b64 exec, -1
    s_branch L_HB_S""")
    a.L("L_HB_U")
    a.I(f"""
    s_add_u32 s9, s9, {WS_U}
    s_add_u32 s{SU}, s{P_WS}, s9
    s_addc_u32 s{SU+1}, s{P_WS+1}, 0
    s_and_b32 s{SU+1}, s{SU+1}, 0xffff
    s_mov_b32 s{SU+2}, 4096
    s_mov_b32 s{SU+3}, 0x20000
    s_mov_b32 s11, 52429""")
    for q in range(8):
        a.I(f"""
        v_add_u32 v9, {64*q}, v2
        v_mul_lo_u32 v10, v9, s11
        v_lshrrev_b32 v10, 18, v10
        v_mul_u32_u24 v11, 5, v10
        v_sub_u32 v11, v9, v11
        v_lshlrev_b32 v10, 6, v10
        v_lshl_add_u32 v{20+q}, v11, 4, v10""")
    a.I(f"""
    v_and_b32 v9, 31, v2
    v_lshlrev_b32 v9, 5, v9
    s_lshr_b32 s10, s2, 5
    s_lshl_b32 s10, s10, 10
    s_add_u32 s10, s10, {WS_FL1B}
    s_barrier                             ; REST""")
    poll(a, f"buffer_load_dword v12, v9, s[{SWS}:{SWS+3}], s10 offen sc1", [12], sleep=4)
    a.I(f"s_mul_i32 s10, s6, {U_ST}\ns_add_u32 m0, s10, {U_L}")
    for q in range(8):
        if q == 7: a.I("s_mov_b64 exec, 0xffffffff")
        a.I(f"buffer_load_dwordx4 v{20+q}, s[{SU}:{SU+3}], 0 offen sc1 lds")
        if q < 7: a.I("s_add_u32 m0, m0, 1024")
    a.I("s_mov_b64 exec, -1")
    a.L("L_HB_S")
    lds_sync(a, 0, 4, 9, 10)
    stamp(a, 5)
    srd(a, SWO, P_WO, 0x80000)
    a.I("s_cmp_eq_u32 s5, 3\ns_cbranch_scc1 L_CONV_DONE")
    Y, AF, BF = 16, 32, 64
    a.I(f"""
    v_and_b32 v9, 31, v2
    v_lshrrev_b32 v10, 5, v2
    v_and_b32 v11, 1, v9
    v_mul_u32_u24 v11, {H_ST}, v11
    v_and_b32 v12, 30, v9
    v_lshl_add_u32 v11, v12, 1, v11
    v_lshl_add_u32 v11, v10, 4, v11
    v_sub_u32 v12, 31, v9
    v_mul_u32_u24 v12, 80, v12
    v_lshl_add_u32 v12, v10, 4, v12
    v_lshlrev_b32 v13, 6, v9
    v_lshl_add_u32 v13, v10, 4, v13
    s_cmp_eq_u32 s5, 2
    s_cselect_b32 s6, 0, s5
    s_cselect_b32 s7, 8, 16
    s_cselect_b32 s9, {80*32}, 0
    s_cselect_b32 s10, 0, 2048
    s_cselect_b32 s11, 2, 1""")
    a.L("L_CJOB")
    a.I(f"""
    s_mul_i32 s12, s6, {2*H_ST}
    s_add_u32 s12, s12, {H_L}
    v_add_u32 v14, s12, v11
    s_mul_i32 s12, s6, {U_ST}
    s_add_u32 s12, s12, s9
    s_add_u32 s12, s12, {U_L}
    v_add_u32 v15, s12, v12
    s_mov_b32 s13, 0""")
    for i in range(16): a.I(f"v_mov_b32 v{Y+i}, 0")
    def crd(t, tt):
        a.I(f"ds_read2_b32 v[{AF+4*t}:{AF+4*t+1}], v14 offset0:{8*tt} offset1:{8*tt+1}")
        a.I(f"ds_read2_b32 v[{AF+4*t+2}:{AF+4*t+3}], v14 offset0:{8*tt+2} offset1:{8*tt+3}")
        a.I(f"ds_read_b128 v[{BF+4*t}:{BF+4*t+3}], v15 offset:{80*(tt>>1)+32*(tt&1)}")
    for t in range(4): crd(t, t)
    a.L("L_CLOOP")
    for t in range(8):
        crd((t + 4) % 8, t + 4)
        a.I("s_waitcnt lgkmcnt(12)")
        a.I(f"v_mfma_f32_32x32x16_bf16 v[{Y}:{Y+15}], v[{AF+4*t}:{AF+4*t+3}], v[{BF+4*t}:{BF+4*t+3}], v[{Y}:{Y+15}]")
    a.I(f"""
    v_add_u32 v14, 256, v14
    v_add_u32 v15, 320, v15
    s_add_u32 s13, s13, 1
    s_cmp_lt_u32 s13, s7
    s_cbranch_scc1 L_CLOOP
    s_lshl_b32 s12, s2, 1
    s_add_u32 s12, s12, s6               ; channel
    s_lshl_b32 s13, s12, 4
    s_lshl_b32 s14, s10, 2
    s_add_u32 s13, s13, s14
    s_add_u32 s13, s13, {WS_FL2}
    s_lshl_b32 s12, s12, 12
    s_add_u32 s12, s12, s10
    s_add_u32 s12, s12, {WS_Y}
    s_waitcnt lgkmcnt(0)""")
    for q in range(4):
        a.I(f"v_cvt_pk_bf16_f32 v{AF+2*q}, v{Y+4*q}, v{Y+4*q+1}\nv_cvt_pk_bf16_f32 v{AF+2*q+1}, v{Y+4*q+2}, v{Y+4*q+3}")
    for pr in range(2):
        a.I(f"v_permlane32_swap_b32 v{AF+4*pr}, v{AF+4*pr+2}\nv_permlane32_swap_b32 v{AF+4*pr+1}, v{AF+4*pr+3}")
    for pr in range(2):
        a.I(f"buffer_store_dwordx4 v[{AF+4*pr}:{AF+4*pr+3}], v13, s[{SWS}:{SWS+3}], s12 offen offset:{32*pr} sc1")
    a.I("s_waitcnt vmcnt(0)")
    store_flag(a, "s13", 16, 17)
    a.I("""
    s_add_u32 s6, s6, 1
    s_sub_u32 s11, s11, 1
    s_cmp_lg_u32 s11, 0
    s_cbranch_scc1 L_CJOB""")
    a.L("L_CONV_DONE")
    stamp(a, 6)
    a.I(f"""
    v_and_b32 v9, 2, v3
    v_lshlrev_b32 v9, 1, v9
    v_xor_b32 v9, v9, v4
    v_lshlrev_b32 v9, 4, v9
    v_lshl_or_b32 v9, v3, 10, v9
    s_lshl_b32 s8, s5, 17
    s_lshl_b32 s9, s4, 7
    s_add_u32 s8, s8, s9""")
    for e in range(16):
        a.I(f"buffer_load_dwordx4 v[{64+4*e}:{67+4*e}], v9, s[{SWO}:{SWO+3}], s8 offen")
        if e < 15: a.I("s_add_u32 s8, s8, 8192")
    srd(a, SX2, P_X, 0x200000); srd(a, SOUT, P_OUT, 0x200000)
    a.I(f"""
    s_lshr_b32 s6, s5, 1           ; nt
    s_and_b32 s7, s5, 1
    v_and_b32 v12, 31, v2
    v_lshrrev_b32 v13, 5, v2       ; h
    v_lshlrev_b32 v14, 10, v12
    v_lshl_or_b32 v14, v13, 3, v14 ; row*1024 + h*8
    s_lshl_b32 s8, s3, 16
    s_lshl_b32 s9, s6, 15
    s_add_u32 s8, s8, s9
    s_lshl_b32 s9, s4, 7
    s_add_u32 s8, s8, s9
    s_lshl_b32 s9, s7, 6
    s_add_u32 s47, s8, s9""")
    for q in range(4):
        a.I(f"buffer_load_dwordx2 v[{128+2*q}:{129+2*q}], v14, s[{SX2}:{SX2+3}], s47 offen offset:{16*q}")
    a.I(f"""
    s_lshl_b32 s8, s6, 7
    s_add_u32 s8, s8, {SM_G}
    v_lshlrev_b32 v15, 2, v12
    v_add_u32 v15, s8, v15
    ds_read_b32 v136, v15          ; g
    v_lshlrev_b32 v15, 4, v12
    s_lshr_b32 s8, s3, 4
    s_lshl_b32 s8, s8, 13
    s_lshl_b32 s9, s4, 10
    s_add_u32 s8, s8, s9
    s_lshl_b32 s9, s7, 9
    s_add_u32 s8, s8, s9
    s_add_u32 s10, s8, {WS_FL2}""")
    lds_sync(a, 1, 4, 16, 17)
    poll(a, f"buffer_load_dword v16, v15, s[{SWS}:{SWS+3}], s10 offen sc1", [16], sleep=8)
    a.I(f"""
    v_lshrrev_b32 v16, 2, v2
    v_lshlrev_b32 v16, 12, v16
    v_and_b32 v17, 3, v2
    v_lshl_or_b32 v16, v17, 4, v16       ; (l>>2)*4096 + (l&3)*16
    s_lshl_b32 s8, s4, 18
    s_lshl_b32 s9, s7, 17
    s_add_u32 s8, s8, s9
    s_lshl_b32 s9, s3, 7
    s_add_u32 s8, s8, s9
    s_lshl_b32 s9, s6, 6
    s_add_u32 s8, s8, s9
    s_add_u32 s8, s8, {WS_Y}
    s_lshl_b32 s10, s5, 11
    s_add_u32 s10, s10, {U_L}
    s_mov_b32 m0, s10
    s_add_u32 s9, s8, 65536
    buffer_load_dwordx4 v16, s[{SWS}:{SWS+3}], s8 offen sc1 lds
    s_add_u32 m0, m0, 1024
    v_and_b32 v16, 15, v2
    buffer_load_dwordx4 v16, s[{SWS}:{SWS+3}], s9 offen sc1 lds""".replace("""    v_and_b32 v16, 15, v2
    buffer_load""", """    s_nop 0
    buffer_load"""))
    a.I(f"""
    v_and_b32 v16, 15, v2
    v_lshrrev_b32 v17, 2, v16            ; rr
    v_and_b32 v18, 3, v16                ; cc
    v_bfe_u32 v20, v2, 4, 1              ; g1
    v_lshlrev_b32 v22, 2, v13
    v_add_u32 v22, v22, v17
    v_lshlrev_b32 v22, 6, v22
    v_lshl_or_b32 v22, v20, 5, v22
    v_lshl_or_b32 v22, v18, 3, v22
    v_add_u32 v22, s10, v22
    v_lshlrev_b32 v21, 2, v13
    v_add_u32 v21, v21, v17
    v_lshlrev_b32 v21, 7, v21
    v_lshrrev_b32 v23, 1, v18
    v_lshl_or_b32 v23, v20, 1, v23
    v_lshrrev_b32 v24, 1, v17
    v_lshl_or_b32 v23, v24, 2, v23
    v_lshl_or_b32 v21, v23, 4, v21
    v_and_b32 v23, 1, v18
    v_lshl_or_b32 v21, v23, 3, v21
    s_lshl_b32 s8, s7, 15
    v_add_u32 v21, s8, v21
    v_xor_b32 v19, 64, v21
    s_mov_b32 s15, 0xffff0000
    s_waitcnt vmcnt(0)""")
    for q in range(4):
        a.I(f"ds_read_b64_tr_b16 v[{64+2*q}:{65+2*q}], v22 offset:{512*q}")
    a.I("s_waitcnt lgkmcnt(0)")
    GP = 140
    for q in range(4):
        for dd in range(2):
            xr, yr, o = 128 + 2 * q + dd, 64 + 2 * q + dd, GP + 4 * q + 2 * dd
            a.I(f"""
            v_lshlrev_b32 v88, 16, v{xr}
            v_lshlrev_b32 v89, 16, v{yr}
            v_and_b32 v90, s15, v{xr}
            v_and_b32 v91, s15, v{yr}
            v_mul_f32 v{o}, v88, v89
            v_mul_f32 v{o+1}, v90, v91""")
    for i in range(16): a.I(f"v_mul_f32 v{GP+i}, v136, v{GP+i}")
    a.I("v_sub_f32 v136, 1.0, v136")
    for i in range(32): a.I(f"v_mov_b32 v{32+i}, 0")
    a.I(f"""
    s_lshl_b32 s8, s3, 1
    s_add_u32 s8, s8, s6
    s_lshl_b32 s8, s8, 15
    s_lshl_b32 s9, s7, 14
    s_add_u32 s8, s8, s9
    s_add_u32 s8, s8, {WS_O}
    s_lshl_b32 s10, s3, 10
    s_add_u32 s10, s10, {WS_FL3}         ; FL3[r]
    s_lshl_b32 s11, s4, 7
    s_add_u32 s11, s11, s10
    v_and_b32 v15, 7, v2
    v_lshlrev_b32 v15, 7, v15
    s_lshl_b32 s9, s5, 12
    s_add_u32 s9, s9, {RED_L}
    v_add_u32 v23, s9, v8
    s_xor_b32 s9, s9, 4096
    v_add_u32 v24, s9, v8""")
    stamp(a, 7)
    a.I("s_barrier                       ; END")
    a.I("s_cmp_lg_u32 s5, 0\ns_cbranch_scc1 L_T1")
    store_flag(a, "s11", 16, 17)
    a.L("L_T1")
    poll(a, f"buffer_load_dword v16, v15, s[{SWS}:{SWS+3}], s10 offen sc1", [16], sleep=0)
    tstamp(a, 1)
    OF = 64
    for hh in range(16):
        a.I(f"buffer_load_dwordx4 v[{OF+4*hh}:{OF+4*hh+3}], v8, s[{SWS}:{SWS+3}], s8 offen offset:{1024*(hh&3)} sc1")
        if hh & 3 == 3 and hh < 15: a.I("s_add_u32 s8, s8, 4096")
    a.I("s_barrier                       ; WO")
    ABS = [128, 156, 0]
    def wrd(hh):
        b = ABS[hh % 3]
        for mt in range(2):
            for j in range(2):
                a.I(f"ds_read_b64_tr_b16 v[{b+4*mt+2*j}:{b+4*mt+2*j+1}], v{21 if mt == 0 else 19} offset:{2048*hh + 1024*j}")
    wrd(0); wrd(1)
    for hh in range(16):
        if hh + 2 < 16: wrd(hh + 2)
        a.I(f"s_waitcnt vmcnt({15 - hh}) lgkmcnt({4*min(2, 15-hh)})")
        b = ABS[hh % 3]
        for mt in range(2):
            a.I(f"v_mfma_f32_32x32x16_bf16 v[{32+16*mt}:{47+16*mt}], v[{b+4*mt}:{b+4*mt+3}], v[{OF+4*hh}:{OF+4*hh+3}], v[{32+16*mt}:{47+16*mt}]")
    tstamp(a, 2)
    a.I("s_cmp_eq_u32 s7, 0\ns_cbranch_scc1 L_S0\ns_nop 9")
    for i in range(4): a.I(f"ds_write_b128 v23, v[{32+4*i}:{35+4*i}] offset:{1024*i}")
    for i in range(16): a.I(f"v_fmac_f32 v{GP+i}, v136, v{48+i}")
    a.I("s_branch L_S1")
    a.L("L_S0")
    a.I("s_nop 11")
    for i in range(4): a.I(f"ds_write_b128 v23, v[{48+4*i}:{51+4*i}] offset:{1024*i}")
    for i in range(16): a.I(f"v_fmac_f32 v{GP+i}, v136, v{32+i}")
    a.L("L_S1")
    a.I("s_waitcnt lgkmcnt(0)\ns_barrier")
    for i in range(4): a.I(f"ds_read_b128 v[{64+4*i}:{67+4*i}], v24 offset:{1024*i}")
    a.I("v_lshl_add_u32 v14, v13, 3, v14")
    for i in range(4):
        a.I(f"s_waitcnt lgkmcnt({3-i})")
        for k in range(4): a.I(f"v_fmac_f32 v{GP+4*i+k}, v136, v{64+4*i+k}")
    for i in range(8): a.I(f"v_cvt_pk_bf16_f32 v{48+i}, v{GP+2*i}, v{GP+2*i+1}")
    for pr in range(2):
        a.I(f"v_permlane32_swap_b32 v{48+4*pr}, v{48+4*pr+2}\nv_permlane32_swap_b32 v{48+4*pr+1}, v{48+4*pr+3}")
    for pr in range(2):
        a.I(f"buffer_store_dwordx4 v[{48+4*pr}:{51+4*pr}], v14, s[{SOUT}:{SOUT+3}], s47 offen offset:{32*pr}")
    tstamp(a, 3); stamp_rt(a, 9); stamp_flush(a)
    a.I("s_endpgm")

    a.L("L_ATT")
    SK, SV, SSH, SX, SWQ = 52, 56, 60, 64, 68
    a.I("""
    s_sub_u32 s6, s5, 4            ; aw
    v_subrev_u32 v1, 256, v0       ; t
    v_and_b32 v6, 31, v1           ; lam
    v_lshrrev_b32 v7, 5, v1        ; j
    v_lshlrev_b32 v9, 12, v7
    v_lshl_add_u32 v9, v6, 2, v9
    s_lshl_b32 s7, s3, 16
    s_lshl_b32 s8, s4, 7           ; hg*128
    s_add_u32 s9, s7, s8
    v_add_u32 v9, s9, v9           ; vo_base
    v_subrev_u32 v21, 3072, v9     ; vo_halo
    v_lshlrev_b32 v22, 4, v6
    s_lshl_b32 s9, s4, 9
    v_and_b32 v40, 2, v3
    v_xor_b32 v40, v40, v4
    v_lshlrev_b32 v40, 4, v40
    v_lshl_or_b32 v40, v3, 10, v40
    v_xor_b32 v41, 64, v40
    s_waitcnt lgkmcnt(0)""")
    srd(a, SK, P_K, 0x200000); srd(a, SV, P_V, 0x200000); srd(a, SSH, P_SH, 4096)
    for i in range(3): a.I(f"buffer_load_dword v{10+i}, v21, s[{SK}:{SK+3}], 0 offen offset:{1024*i}")
    for i in range(4): a.I(f"buffer_load_dword v{13+i}, v9, s[{SK}:{SK+3}], 0 offen offset:{1024*i}")
    for i in range(4): a.I(f"buffer_load_dword v{17+i}, v9, s[{SV}:{SV+3}], 0 offen offset:{1024*i}")
    a.I(f"buffer_load_dwordx4 v[24:27], v22, s[{SSH}:{SSH+3}], s9 offen")
    srd(a, SX, P_X, 0x200000); srd(a, SWQ, P_WQ, 0x80000)
    a.I("""
    s_and_b32 s10, s4, 3
    s_lshl_b32 s10, s10, 1         ; 2i
    s_lshl_b32 s11, s6, 7
    s_add_u32 s11, s11, s7         ; 64r*1024 + aw*128
    s_lshl_b32 s12, s6, 10         ; aw*1024""")
    for e in range(6):
        a.I(f"""
        s_cmp_le_u32 s10, {e}
        s_cselect_b32 s13, {e+2}, {e}
        s_lshl_b32 s13, s13, 13
        s_add_u32 m0, s12, s13
        s_add_u32 s13, s13, s11
        buffer_load_dwordx4 v5, s[{SX}:{SX+3}], s13 offen lds""")
    a.I(f"""
    s_lshl_b32 s14, s6, 16
    s_add_u32 s14, s14, s8
    s_lshl_b32 s12, s6, 13
    s_add_u32 m0, s12, {WQ_L}""")
    for e in range(8):
        a.I(f"buffer_load_dwordx4 v{40 + (e & 1)}, s[{SWQ}:{SWQ+3}], s14 offen lds")
        if e < 7: a.I("s_add_u32 m0, m0, 1024\ns_add_u32 s14, s14, 8192")
    srd(a, SWS, P_WS, WS_SIZE)
    a.I("s_mov_b32 s15, 0xffff0000\ns_waitcnt vmcnt(14)")
    stamp(a, 1)
    a.I("""
    v_lshlrev_b32 v44, 16, v24
    v_and_b32 v45, s15, v24
    v_lshlrev_b32 v46, 16, v25
    v_and_b32 v47, s15, v25
    v_lshlrev_b32 v48, 16, v26
    v_and_b32 v49, s15, v26
    v_lshlrev_b32 v50, 16, v27
    v_and_b32 v51, s15, v27""")
    for i in range(7):
        a.I(f"v_lshlrev_b32 v{52+i}, 16, v{10+i}\nv_and_b32 v{60+i}, s15, v{10+i}")
    for i in range(4):
        a.I(f"v_lshlrev_b32 v{68+i}, 16, v{17+i}\nv_and_b32 v{72+i}, s15, v{17+i}")
    for c in range(2):
        kb, wb, vb, ob = 52 + 8 * c, 44 + 4 * c, 68 + 4 * c, 76 + 4 * c
        for i in range(4): a.I(f"v_mul_f32 v{ob+i}, v{kb+i}, v{wb+3}")
        for jj in (2, 1, 0):
            for i in range(4): a.I(f"v_fmac_f32 v{ob+i}, v{kb+i+3-jj}, v{wb+jj}")
        for i in range(4): a.I(f"v_mul_f32 v{ob+i}, v{ob+i}, v{vb+i}")
    a.I(f"""
    v_cvt_pk_bf16_f32 v84, v79, v78
    v_cvt_pk_bf16_f32 v85, v77, v76
    v_cvt_pk_bf16_f32 v86, v83, v82
    v_cvt_pk_bf16_f32 v87, v81, v80
    v_mul_u32_u24 v9, 288, v6
    v_sub_u32 v21, 15, v7
    v_lshl_add_u32 v9, v21, 3, v9
    s_mov_b32 s15, {TB}
    v_add_u32 v9, s15, v9
    ds_write_b64 v9, v[84:85]
    ds_write_b64 v9, v[86:87] offset:144""")
    xfrag_bases(a, 20, 21, 10, 11, 12)
    a.I(f"""
    s_lshr_b32 s10, s6, 2                ; nt
    s_and_b32 s11, s6, 3                 ; hd
    s_lshl_b32 s12, s10, 15
    v_add_u32 v20, s12, v20
    v_add_u32 v21, s12, v21
    v_lshrrev_b32 v11, 4, v2             ; g
    v_bfe_u32 v13, v2, 2, 2              ; rr
    v_bfe_u32 v14, v2, 1, 1              ; cc>>1
    s_lshl_b32 s12, s11, 1
    v_or_b32 v14, s12, v14
    v_and_b32 v15, 2, v13
    v_and_b32 v16, 1, v11
    v_lshl_or_b32 v15, v16, 2, v15
    v_xor_b32 v14, v14, v15
    v_lshlrev_b32 v17, 4, v14
    v_lshl_or_b32 v17, v13, 7, v17
    v_lshl_or_b32 v17, v11, 10, v17
    v_and_b32 v14, 1, v2
    v_lshl_or_b32 v17, v14, 3, v17
    v_add_u32 v17, {WQ_L}, v17
    v_lshrrev_b32 v22, 3, v1             ; ch
    v_and_b32 v23, 7, v1                 ; chunk
    v_mul_u32_u24 v18, 144, v22
    v_lshl_add_u32 v18, v23, 4, v18
    v_add_u32 v18, s15, v18
    v_lshlrev_b32 v19, 12, v22
    v_lshl_add_u32 v19, v23, 4, v19
    s_lshl_b32 s12, s4, 18
    s_lshl_b32 s13, s3, 7
    s_sub_u32 s12, s12, s13
    s_add_u32 s12, s12, {WS_U + 1984*2}""")
    for i in range(8): a.I(f"v_mov_b32 v{24+i}, 0")
    stamp(a, 2)
    a.I("s_waitcnt vmcnt(0) lgkmcnt(0)\ns_barrier")
    stamp(a, 3)
    a.I("ds_read_b128 v[80:83], v18")
    def q_reads(s):
        b = 32 + 12 * (s % 4)
        a.I(f"ds_read_b64_tr_b16 v[{b}:{b+1}], v17 offset:{4096*s}")
        a.I(f"ds_read_b64_tr_b16 v[{b+2}:{b+3}], v17 offset:{4096*s+512}")
        a.I(f"ds_read_b128 v[{b+4}:{b+7}], v{20+(s&1)} offset:{1024*(s>>1)}")
        a.I(f"ds_read_b128 v[{b+8}:{b+11}], v{20+(s&1)} offset:{1024*(s>>1)+16384}")
    for s in range(3): q_reads(s)
    a.I(f"s_waitcnt lgkmcnt(12)\nbuffer_store_dwordx4 v[80:83], v19, s[{SWS}:{SWS+3}], s12 offen sc1")
    for s in range(16):
        if s + 3 < 16: q_reads(s + 3)
        a.I(f"s_waitcnt lgkmcnt({4*min(3, 15-s)})")
        b = 32 + 12 * (s % 4)
        a.I(f"v_mfma_f32_16x16x32_bf16 v[24:27], v[{b}:{b+3}], v[{b+4}:{b+7}], v[24:27]")
        a.I(f"v_mfma_f32_16x16x32_bf16 v[28:31], v[{b}:{b+3}], v[{b+8}:{b+11}], v[28:31]")
    Q, CM, O, SA, SB, PA, PB, KF, VF = 4, 16, 32, 48, 64, 80, 84, 88, 96
    AKC, AVC, AKN, AVN = 112, 113, 114, 115
    a.I(f"""
    v_and_b32 v14, 27, v2
    v_cmp_eq_u32 vcc, 16, v14
    v_mov_b32 v15, 0x3f803f80
    v_cndmask_b32 v14, 0, v15, vcc""")
    for i in range(16): a.I(f"v_mov_b32 v{VF+i}, v14")
    a.I(f"""
    v_cvt_pk_bf16_f32 v{Q}, v24, v25
    v_cvt_pk_bf16_f32 v{Q+1}, v26, v27
    v_cvt_pk_bf16_f32 v{Q+2}, v28, v29
    v_cvt_pk_bf16_f32 v{Q+3}, v30, v31
    v_permlane16_swap_b32 v{Q}, v{Q+2}
    v_permlane16_swap_b32 v{Q+1}, v{Q+3}
    v_mov_b32 v10, 0""")
    for i in range(4): a.I(f"v_dot2_f32_bf16 v10, v{Q+i}, v{Q+i}, v10")
    a.I(f"""
    s_lshl_b32 s7, s3, 1
    s_add_u32 s7, s7, s10
    s_lshl_b32 s7, s7, 5
    s_lshl_b32 s12, s4, 2
    s_add_u32 s7, s7, s12
    s_add_u32 s7, s7, s11
    s_lshl_b32 s7, s7, 10
    s_add_u32 s7, s7, {WS_O}
    v_mov_b32 v11, v10
    v_permlane32_swap_b32 v10, v11
    v_add_f32 v10, v10, v11              ; |q|^2
    v_and_b32 v3, 15, v2
    v_lshlrev_b32 v3, 4, v3
    v_lshrrev_b32 v14, 5, v2
    v_lshl_or_b32 v3, v14, 8, v3
    v_add_u32 v3, 1024, v3
    s_mov_b32 s12, 0x0000ffff
    s_mov_b32 s13, 0x0000ffff
    v_mov_b32 v12, {SM_KN}
    s_lshl_b32 s9, s6, 11
    s_add_u32 s10, s9, {WS_KV + 16384}
    s_mov_b32 s14, 0""")
    stamp(a, 4)
    a.I("s_waitcnt vmcnt(0)\ns_barrier")
    stamp(a, 5)
    a.I(f"ds_read_b32 v12, v12\ns_mov_b32 m0, s9")
    for c in range(7):
        a.I(f"""
        buffer_load_dwordx4 v8, s[{SWS}:{SWS+3}], s10 offen sc1 lds
        buffer_load_dwordx4 v8, s[{SWS}:{SWS+3}], s10 offen offset:1024 sc1 lds""")
        if c < 6: a.I("s_add_u32 m0, m0, 16384\ns_add_u32 s10, s10, 16384")
    a.I(f"""
    s_waitcnt lgkmcnt(0)
    v_mul_f32 v10, v10, v12
    v_sqrt_f32 v10, v10
    s_nop 0
    v_mul_f32 v10, {hex(f2u(-(1.0 + 2.0**-6)))}, v10""")
    for i in range(16): a.I(f"v_mov_b32 v{CM+i}, v10")
    def rdK(buf, t):
        r = AKC if t < 8 else AKN
        a.I(f"ds_read_b128 v[{KF+4*buf}:{KF+4*buf+3}], v{r} offset:{2048*(t&7)}")
    def rdV(buf, t):
        r = AVC if t < 8 else AVN
        a.I("s_mov_b64 exec, s[12:13]")
        a.I(f"ds_read_b128 v[{VF+8*buf}:{VF+8*buf+3}], v{r} offset:{2048*(t&7)}")
        a.I(f"ds_read_b128 v[{VF+8*buf+4}:{VF+8*buf+7}], v{r} offset:{2048*(t&7)+512}")
        a.I("s_mov_b64 exec, -1")
    def qk(S, buf): a.I(f"v_mfma_f32_32x32x16_bf16 v[{S}:{S+15}], v[{KF+4*buf}:{KF+4*buf+3}], v[{Q}:{Q+3}], v[{CM}:{CM+15}]")
    def pv(vreg, p): a.I(f"v_mfma_f32_32x32x16_bf16 v[{O}:{O+15}], v[{vreg}:{vreg+3}], v[{p}:{p+3}], v[{O}:{O+15}]")
    def ex(S, lo, hi):
        for i in range(lo, hi): a.I(f"v_exp_f32 v{S+i}, v{S+i}")
    def cv(p, S):
        for i in range(4): a.I(f"v_cvt_pk_bf16_f32 v{p+i}, v{S+2*i}, v{S+2*i+1}")
    a.L("L_RESTART")
    a.I(f"""
    v_add_u32 v{AKC}, {KV0_L}, v8
    v_add_u32 v{AVC}, {KV0_L}, v3
    v_mov_b32 v{AKN}, v8
    v_mov_b32 v{AVN}, v3""")
    rdK(0, 0); rdK(1, 1); rdV(0, 0)
    for i in range(16): a.I(f"v_mov_b32 v{O+i}, 0")
    for i in range(4): a.I(f"v_mov_b32 v{PB+i}, 0")
    a.I("s_waitcnt lgkmcnt(2)")
    qk(SA, 0)
    a.I("s_mov_b32 s15, 0")
    a.L("L_LOOP")
    for t in range(8):
        par = t & 1
        cur, nxt = (SA, SB) if par == 0 else (SB, SA)
        if par == 0: a.I(f"s_setprio {3 - (t >> 1)}")
        if t == 6:
            a.I("""
            s_or_b32 s11, s14, s15
            s_cmp_lg_u32 s11, 0
            s_cbranch_scc1 L_NOBAR
            s_waitcnt vmcnt(0)
            s_barrier
            L_NOBAR:""")
        a.I("s_waitcnt lgkmcnt(0)")
        qk(nxt, par ^ 1)
        rdK(par, t + 2)
        ex(cur, 0, 6)
        pv(VF + 8 * (par ^ 1) + 4, PB)
        rdV(par ^ 1, t + 1)
        ex(cur, 6, 8)
        cv(PA, cur)
        ex(cur, 8, 12)
        pv(VF + 8 * par, PA)
        ex(cur, 12, 16)
        cv(PB, cur + 8)
    if STAMP:
        a.I("s_memtime s[76:77]\ns_waitcnt lgkmcnt(0)\ns_mov_b32 m0, s15\nv_writelane_b32 v120, s76, m0")
    a.I(f"""
    v_mov_b32 v{AKC}, v{AKN}
    v_mov_b32 v{AVC}, v{AVN}
    v_add_u32 v{AKN}, 16384, v{AKN}
    v_add_u32 v{AVN}, 16384, v{AVN}
    s_add_u32 s15, s15, 1
    s_cmp_lt_u32 s15, 8
    s_cbranch_scc1 L_LOOP""")
    pv(VF + 8 + 4, PB)
    a.I(f"""
    s_setprio 0
    s_cmp_lg_u32 s14, 0
    s_cbranch_scc1 L_FIN
    s_nop 7
    v_mov_b32 v9, {hex(f2u(2.0**-24))}
    v_mov_b32 v10, {hex(f2u(2.0**100))}
    v_cmp_ge_f32 vcc, v{O+8}, v9
    v_cmp_le_f32 s[10:11], v{O+8}, v10
    s_and_b64 vcc, vcc, s[10:11]
    s_cmp_eq_u64 vcc, -1
    s_cbranch_scc1 L_FIN
    s_mov_b32 s14, 1
    v_add_u32 v1, {KV0_L}, v8
    v_mov_b32 v10, 0xff800000
    s_mov_b32 s15, 0
    s_waitcnt lgkmcnt(0)
    L_MAXLOOP:
    ds_read_b128 v[{KF}:{KF+3}], v1
    s_waitcnt lgkmcnt(0)
    v_mfma_f32_32x32x16_bf16 v[{SA}:{SA+15}], v[{KF}:{KF+3}], v[{Q}:{Q+3}], 0""")
    for i in range(8): a.I(f"v_max3_f32 v10, v10, v{SA+2*i}, v{SA+2*i+1}")
    a.I(f"""
    v_add_u32 v1, 2048, v1
    s_add_u32 s15, s15, 1
    s_cmp_lg_u32 s15, 8
    s_cbranch_scc1 L_MAX2
    v_mov_b32 v1, v8
    L_MAX2:
    s_cmp_lt_u32 s15, 64
    s_cbranch_scc1 L_MAXLOOP
    v_mov_b32 v9, v10
    v_permlane32_swap_b32 v10, v9
    v_max_f32 v10, v10, v9
    v_sub_f32 v10, 0, v10""")
    for i in range(16): a.I(f"v_mov_b32 v{CM+i}, v10")
    a.I("s_branch L_RESTART")
    a.L("L_FIN")
    stamp(a, 6)
    a.I(f"s_nop 11\nv_rcp_f32 v9, v{O+8}")
    for i in range(8): a.I(f"v_mul_f32 v{O+i}, v{O+i}, v9")
    for i in range(4): a.I(f"v_cvt_pk_bf16_f32 v{PA+i}, v{O+2*i}, v{O+2*i+1}")
    SWO = 52
    a.I(f"buffer_store_dwordx4 v[{PA}:{PA+3}], v8, s[{SWS}:{SWS+3}], s7 offen sc1")
    srd(a, SWO, P_WO, 0x80000)
    a.I(f"""
    v_lshrrev_b32 v3, 3, v2
    v_and_b32 v4, 7, v2
    v_and_b32 v9, 2, v3
    v_lshlrev_b32 v9, 1, v9
    v_xor_b32 v9, v9, v4
    v_lshlrev_b32 v9, 4, v9
    v_lshl_or_b32 v9, v3, 10, v9
    s_lshl_b32 s10, s6, 16
    s_add_u32 s10, s10, s8
    s_lshl_b32 s11, s6, 13
    s_mov_b32 m0, s11
    s_waitcnt vmcnt(0) lgkmcnt(0)
    s_barrier                       ; END""")
    stamp(a, 7)
    for e in range(8):
        a.I(f"buffer_load_dwordx4 v9, s[{SWO}:{SWO+3}], s10 offen lds")
        if e < 7: a.I("s_add_u32 m0, m0, 1024\ns_add_u32 s10, s10, 8192")
    a.I("s_waitcnt vmcnt(0)\ns_barrier                       ; WO")
    if STAMP:
        a.I(f"s_lshl_b32 s100, s2, 4\ns_add_u32 s100, s100, s5\ns_lshl_b32 s100, s100, 6\ns_add_u32 s100, s100, {WS_ST + 0x40000}")
        a.I(f"v_lshlrev_b32 v1, 2, v2\ns_mov_b64 exec, 0xff\nbuffer_store_dword v120, v1, s[{SWS}:{SWS+3}], s100 offen\ns_mov_b64 exec, -1")
    stamp_rt(a, 9); stamp_flush(a)
    a.I("L_END:\ns_endpgm")
    a.finalize()
    return a

def main(out):
    ref = open(f"cdna_kernels/{NAME}.s.ref").read()
    hdr = [l for l in ref.split("\n") if l.startswith(";") and "@launch" not in l]
    a = gen()
    s = "\n".join(hdr) + "\n"
    s += f"; @launch grid=(256,1,1) block=(768,1,1) lds={LDS_BYTES}\n"
    s += f'.amdgcn_target "amdgcn-amd-amdhsa--gfx950"\n.text\n.globl {KNAME}\n.p2align 8\n.type {KNAME},@function\n{KNAME}:\n'
    s += a.text()
    s += f""".section .rodata,"a"
.p2align 6
.amdhsa_kernel {KNAME}
  .amdhsa_next_free_vgpr 168
  .amdhsa_next_free_sgpr 102
  .amdhsa_accum_offset 168
  .amdhsa_group_segment_fixed_size 0
  .amdhsa_kernarg_size 120
  .amdhsa_user_sgpr_count 2
  .amdhsa_user_sgpr_kernarg_segment_ptr 1
  .amdhsa_system_sgpr_workgroup_id_x 1
.end_amdhsa_kernel
"""
    open(out, "w").write(s)

if __name__ == "__main__":
    if "--stamp" in sys.argv:
        STAMP = True; sys.argv.remove("--stamp")
    if "--tail" in sys.argv:
        TAIL = True; sys.argv.remove("--tail")
    main(sys.argv[1] if len(sys.argv) > 1 else f"cdna_kernels/{NAME}.s")
```
